```python
import torch

def _softmax(x, axis=-1):
    return torch.softmax(x, dim=axis)
def _gelu(x):
    return torch.nn.functional.gelu(x, approximate="tanh")
def _silu(x):
    return torch.nn.functional.silu(x)
def _sigmoid(x):
    return torch.sigmoid(x)
def _layernorm(x, axis=-1, eps=1e-5):
    m = x.mean(dim=axis, keepdim=True)
    v = x.var(dim=axis, keepdim=True, unbiased=False)
    return (x - m) / torch.sqrt(v + eps)
def _scatter_add(tgt, idx, src, axis=0):
    return tgt.clone().index_add_(axis, idx, src)
def _segment_sum(src, seg, n):
    out = torch.zeros((n,) + src.shape[1:], dtype=src.dtype)
    return out.index_add_(0, seg, src)
def _pad(x, pw):
    flat = tuple(v for pair in reversed(pw) for v in pair)
    return torch.nn.functional.pad(x, flat)

kernel_name = 'recurrent_scan__grouped_kv_mqa__geglu_ffn__prompt'

def setup_inputs():

    _w = (lambda a: (lambda t: t.to(torch.bfloat16) if t.is_floating_point() else t)(torch.as_tensor(a)))
    def _A_setup():
        B, S, D, H = 1, 2048, 512, 32
        Dh = D // H
        return {
            "x": _w((lambda *s: torch.randn(*s, dtype=torch.bfloat16) * 0.05)(B, S, D)),
            "wq": _w((lambda *s: torch.randn(*s, dtype=torch.bfloat16) * 0.05)(D, H * Dh)),
            "wk": _w((lambda *s: torch.randn(*s, dtype=torch.bfloat16) * 0.05)(D, Dh)),
            "wv": _w((lambda *s: torch.randn(*s, dtype=torch.bfloat16) * 0.05)(D, Dh)),
            "wo": _w((lambda *s: torch.randn(*s, dtype=torch.bfloat16) * 0.05)(H * Dh, D)),
        }
    _A_in = _A_setup()

    def _B_setup():
        B, S, D, F = 1, 2048, 512, 1376
        return {
            "x": _w((lambda *s: torch.randn(*s, dtype=torch.bfloat16) * 0.05)(B, S, D)),
            "w_gate": _w((lambda *s: torch.randn(*s, dtype=torch.bfloat16) * 0.05)(D, F)),
            "w_up": _w((lambda *s: torch.randn(*s, dtype=torch.bfloat16) * 0.05)(D, F)),
            "w_down": _w((lambda *s: torch.randn(*s, dtype=torch.bfloat16) * 0.05)(F, D)),
        }
    _B_in = _B_setup()

    return {
        "A_x": _A_in["x"],
        "A_wq": _A_in["wq"],
        "A_wk": _A_in["wk"],
        "A_wv": _A_in["wv"],
        "A_wo": _A_in["wo"],
        "B_x": _B_in["x"],
        "B_w_gate": _B_in["w_gate"],
        "B_w_up": _B_in["w_up"],
        "B_w_down": _B_in["w_down"],
    }

def reference(A_x, A_wq, A_wk, A_wv, A_wo, B_x, B_w_gate, B_w_up, B_w_down):
    def _A_ref(x, wq, wk, wv, wo):
        B, S, D = x.shape
        H = 32
        Dh = D // H
        q = (lambda x, *d: x.permute(*d))((x @ wq).reshape(B, S, H, Dh), 0, 2, 1, 3)
        k = x @ wk
        v = x @ wv
        scores = torch.einsum("bhqd,bkd->bhqk", q, k) * (Dh ** -0.5)
        p = _softmax(scores, axis=-1)
        o = torch.einsum("bhqk,bkd->bhqd", p, v)
        return (lambda x, *d: x.permute(*d))(o, 0, 2, 1, 3).reshape(B, S, H * Dh) @ wo

    def _B_ref(x, w_gate, w_up, w_down):
        return (_gelu(x @ w_gate) * (x @ w_up)) @ w_down

    x = A_x
    xn = _layernorm(x, axis=-1)
    s = _A_ref(xn, A_wq, A_wk, A_wv, A_wo)
    g = _silu(_B_ref(xn, B_w_gate, B_w_up, B_w_down))
    return x + s * g
```

```python
class Asm:
    def __init__(self):
        self.lines = []
        self.vm = []
        self._lab = 0

    def e(self, s):
        for ln in s.split("\n"):
            ln = ln.strip()
            if ln:
                self.lines.append("    " + ln if not ln.endswith(":") else ln)

    def c(self, s):
        self.lines.append("    ; " + s)

    def label(self, name):
        self.lines.append(name + ":")

    def newlabel(self, base):
        self._lab += 1
        return f"{base}_{self._lab}"

    def vmem(self, s, tag):
        self.e(s)
        self.vm.append(tag)

    def vm_count_after(self, tag):
        idx = max(i for i, t in enumerate(self.vm) if t == tag)
        return len(self.vm) - 1 - idx

    def wait_vm(self, tag, extra=""):
        n = self.vm_count_after(tag)
        assert n <= 63, n
        self.e(f"s_waitcnt vmcnt({n}){extra}")
        idx = len(self.vm) - n
        self.vm = self.vm[idx:]

    def text(self):
        return "\n".join(self.lines) + "\n"


def vr(a, n=1):
    return f"v{a}" if n == 1 else f"v[{a}:{a+n-1}]"

def sr(a, n=1):
    return f"s{a}" if n == 1 else f"s[{a}:{a+n-1}]"

def mfma(d, a, b, c=None):
    cs = "0" if c is None else vr(c, 16)
    return f"v_mfma_f32_32x32x16_bf16 {vr(d,16)}, {vr(a,4)}, {vr(b,4)}, {cs}"

def srd(A, dst, base, size):
    A.e(f"s_mov_b32 s{dst}, s{base}")
    A.e(f"s_mov_b32 s{dst+1}, s{base+1}")
    A.e(f"s_mov_b32 s{dst+2}, {hex(size)}")
    A.e(f"s_mov_b32 s{dst+3}, 0x00020000")

def kernel_begin(A, name):
    A.lines.append(".text")
    A.lines.append(f".globl {name}")
    A.lines.append(".p2align 8")
    A.lines.append(f".type {name},@function")
    A.lines.append(f"{name}:")

def kernel_desc(name, vgpr, sgpr=96):
    acc = (vgpr + 3) // 4 * 4
    return f""".section .rodata,"a"
.p2align 6
.amdhsa_kernel {name}
  .amdhsa_next_free_vgpr {vgpr}
  .amdhsa_next_free_sgpr {sgpr}
  .amdhsa_accum_offset {acc}
  .amdhsa_group_segment_fixed_size 0
  .amdhsa_kernarg_size 96
  .amdhsa_user_sgpr_count 2
  .amdhsa_user_sgpr_kernarg_segment_ptr 1
  .amdhsa_system_sgpr_workgroup_id_x 1
.end_amdhsa_kernel
"""

import struct
def f32hex(x):
    return "0x%08x" % struct.unpack("<I", struct.pack("<f", x))[0]
```

```python
from asmlib import *
from layout import *

GU_STAGE = 6400
GU_NS = 5
GU_LDS_PER_WAVE = GU_NS * GU_STAGE
DN_NS = 12
DN_LDS_PER_WAVE = DN_NS * 1024

def gen_gateup_wave(A, name, S_WS, S_WG, S_WU, S_GW, S_X, S_J, lds_base, sb=48, store_flags=""):
    ws, wg, wu = (f"s[{r}:{r+3}]" for r in (S_WS, S_WG, S_WU))
    S_T0, S_T1, S_RT, S_F0, S_WOFF, S_XOFF, S_LDS = range(sb, sb + 7)
    ACC = 0
    XF = 96
    AF = 160
    V_L, V_L16, V_D0, V_TR, V_T0, V_T1, V_T2 = 184, 185, 186, 189, 190, 191, 192
    CK0, CK1, CONE = 194, 196, 198
    TMP = 200
    done = f"{name}_gu_done"
    A.e(f"v_and_b32 v{V_L}, 63, v0")
    A.e(f"s_lshl_b32 s{S_RT}, s{S_X}, 1")
    A.e(f"s_and_b32 s{S_T0}, s{S_J}, 1")
    A.e(f"s_add_u32 s{S_RT}, s{S_RT}, s{S_T0}")
    A.e(f"s_lshl_b32 s{S_RT}, s{S_RT}, 1")
    A.e(f"s_and_b32 s{S_T0}, s{S_GW}, 1")
    A.e(f"s_add_u32 s{S_RT}, s{S_RT}, s{S_T0}")
    A.e(f"s_lshl_b32 s{S_RT}, s{S_RT}, 1")
    A.e(f"s_lshr_b32 s{S_F0}, s{S_J}, 1")
    A.e(f"s_lshl_b32 s{S_F0}, s{S_F0}, 1")
    A.e(f"s_lshr_b32 s{S_T0}, s{S_GW}, 1")
    A.e(f"s_add_u32 s{S_F0}, s{S_F0}, s{S_T0}")
    A.e(f"s_mul_i32 s{S_F0}, s{S_F0}, 3")
    A.e(f"s_cmp_ge_u32 s{S_F0}, 86")
    A.e(f"s_cbranch_scc1 {done}")
    A.e(f"s_lshl_b32 s{S_WOFF}, s{S_F0}, 5")
    A.e(f"s_lshl_b32 s{S_XOFF}, s{S_RT}, 15")
    A.e(f"s_mul_i32 s{S_LDS}, s{S_GW}, {GU_LDS_PER_WAVE}")
    A.e(f"s_add_u32 s{S_LDS}, s{S_LDS}, {lds_base}")
    A.e(f"v_lshlrev_b32 v{V_L16}, 4, v{V_L}")
    for n in range(3):
        A.e(f"v_add_u32 v{V_T0}, {64*n}, v{V_L}")
        A.e(f"v_mul_u32_u24 v{V_T1}, 43691, v{V_T0}")
        A.e(f"v_lshrrev_b32 v{V_T1}, 18, v{V_T1}")
        A.e(f"v_mul_u32_u24 v{V_T2}, 6, v{V_T1}")
        A.e(f"v_sub_u32 v{V_T2}, v{V_T0}, v{V_T2}")
        A.e(f"v_mul_u32_u24 v{V_D0+n}, 2752, v{V_T1}")
        A.e(f"v_lshl_add_u32 v{V_D0+n}, v{V_T2}, 4, v{V_D0+n}")

    def w_dma(c):
        st = c % GU_NS
        A.e(f"s_add_u32 s{S_T0}, s{S_WOFF}, {c*32*2752}")
        for mi, m in enumerate((wg, wu)):
            for n in range(3):
                A.e(f"s_add_u32 m0, s{S_LDS}, {st*GU_STAGE + mi*3200 + n*1024}")
                A.e("s_nop 0")
                A.vmem(f"buffer_load_dwordx4 v{V_D0+n}, {m}, s{S_T0} offen lds", f"c{c}")

    def x_load(c):
        base = XF + (c % 4) * 16
        for a in range(2):
            A.e(f"s_add_u32 s{S_T1}, s{S_XOFF}, {a*32768 + c*2048}")
            for k in range(2):
                A.vmem(f"buffer_load_dwordx4 {vr(base + (k*2+a)*4, 4)}, v{V_L16}, {ws}, s{S_T1} offen offset:{k*1024}", f"c{c}")

    for c in range(4):
        w_dma(c)
        x_load(c)
    A.e(f"v_bfe_u32 v{V_T0}, v{V_L}, 4, 1")
    A.e(f"v_mul_u32_u24 v{V_TR}, 3200, v{V_T0}")
    A.e(f"v_lshrrev_b32 v{V_T0}, 5, v{V_L}")
    A.e(f"v_bfe_u32 v{V_T1}, v{V_L}, 2, 2")
    A.e(f"v_lshl_add_u32 v{V_T0}, v{V_T0}, 3, v{V_T1}")
    A.e(f"v_mul_u32_u24 v{V_T0}, 96, v{V_T0}")
    A.e(f"v_add_u32 v{V_TR}, v{V_TR}, v{V_T0}")
    A.e(f"v_and_b32 v{V_T1}, 3, v{V_L}")
    A.e(f"v_lshl_add_u32 v{V_TR}, v{V_T1}, 3, v{V_TR}")
    A.e(f"v_add_u32 v{V_TR}, s{S_LDS}, v{V_TR}")
    k0 = -2.0 * 0.7978845608028654 * LOG2E
    k1 = k0 * 0.044715
    for r, val in ((CK0, k0), (CK1, k1), (CONE, 1.0)):
        A.e(f"v_mov_b32 v{r}, {f32hex(val)}")
        A.e(f"v_mov_b32 v{r+1}, {f32hex(val)}")

    def tr_reads(s):
        c, k = s // 2, s % 2
        off = (c % GU_NS) * GU_STAGE + k * 1536
        ab = AF + (s % 2) * 12
        for b in range(3):
            A.e(f"ds_read_b64_tr_b16 {vr(ab+4*b,2)}, v{V_TR} offset:{off + b*32}")
            A.e(f"ds_read_b64_tr_b16 {vr(ab+4*b+2,2)}, v{V_TR} offset:{off + b*32 + 384}")

    A.wait_vm("c0")
    tr_reads(0)
    for s in range(32):
        c, k = s // 2, s % 2
        if s + 1 < 32:
            if k == 1:
                A.wait_vm(f"c{c+1}")
            tr_reads(s + 1)
            A.e("s_waitcnt lgkmcnt(6)")
        else:
            A.e("s_waitcnt lgkmcnt(0)")
        if k == 0 and c + 4 < 16:
            w_dma(c + 4)
        ab = AF + (s % 2) * 12
        xb = XF + (c % 4) * 16 + k * 8
        for b in range(3):
            for a in range(2):
                acc = ACC + (a * 3 + b) * 16
                A.e(mfma(acc, ab + 4 * b, xb + 4 * a, None if s == 0 else acc))
        if k == 1 and c + 4 < 16:
            x_load(c + 4)
    A.e("s_nop 7")
    for b in range(3):
        skip = f"{name}_gu_skip{b}"
        if b > 0:
            A.e(f"s_add_u32 s{S_T0}, s{S_F0}, {b}")
            A.e(f"s_cmp_ge_u32 s{S_T0}, 86")
            A.e(f"s_cbranch_scc1 {done}")
        for a in range(2):
            acc = ACC + (a * 3 + b) * 16
            T = TMP + a * 16
            for p in range(4):
                g = acc + 2 * p
                A.e(f"v_pk_mul_f32 {vr(T+2*p,2)}, {vr(g,2)}, {vr(g,2)}")
            for p in range(4):
                A.e(f"v_pk_fma_f32 {vr(T+2*p,2)}, {vr(T+2*p,2)}, {vr(CK1,2)}, {vr(CK0,2)}")
            for p in range(4):
                g = acc + 2 * p
                A.e(f"v_pk_mul_f32 {vr(T+2*p,2)}, {vr(T+2*p,2)}, {vr(g,2)}")
            for i in range(8):
                A.e(f"v_exp_f32 v{T+i}, v{T+i}")
            for p in range(4):
                g = acc + 2 * p
                A.e(f"v_pk_mul_f32 {vr(g,2)}, {vr(g,2)}, {vr(g+8,2)}")
            for p in range(4):
                A.e(f"v_pk_add_f32 {vr(T+2*p,2)}, {vr(T+2*p,2)}, {vr(CONE,2)}")
            for i in range(8):
                A.e(f"v_rcp_f32 v{T+i}, v{T+i}")
            A.e(f"s_add_u32 s{S_T0}, s{S_RT}, {a}")
            A.e(f"s_mul_i32 s{S_T0}, s{S_T0}, 86")
            A.e(f"s_add_u32 s{S_T0}, s{S_T0}, s{S_F0}")
            A.e(f"s_lshl_b32 s{S_T0}, s{S_T0}, 10")
            A.e(f"s_add_u32 s{S_T0}, s{S_T0}, {WS_H}")
            for p in range(4):
                g = acc + 2 * p
                A.e(f"v_pk_mul_f32 {vr(g,2)}, {vr(g,2)}, {vr(T+2*p,2)}")
            for p in range(4):
                g = acc + 2 * p
                A.e(f"v_cvt_pk_bf16_f32 v{T+8+p}, v{g}, v{g+1}")
            A.e(f"buffer_store_dwordx4 {vr(T+8,4)}, v{V_L16}, {ws}, s{S_T0} offen offset:{b*1024}{store_flags}")
    A.label(done)


def gen_down_wave(A, name, S_WS, S_WD, S_GW, S_X, S_J, lds_base, lds_stride, sb=48, load_flags=""):
    ws, wd = (f"s[{r}:{r+3}]" for r in (S_WS, S_WD))
    S_T0, S_T1, S_RT, S_CT, S_WOFF, S_HOFF, S_LDS = range(sb, sb + 7)
    ACC = 0
    HF = 16
    AF = 16 + 4 * DN_NS
    V_L, V_L16, V_D, V_TR, V_T0, V_T1 = 184, 185, 186, 189, 190, 191
    T = 96
    A.vm = []
    A.e(f"v_mbcnt_lo_u32_b32 v{V_L}, -1, 0")
    A.e(f"v_mbcnt_hi_u32_b32 v{V_L}, -1, v{V_L}")
    A.e(f"s_lshl_b32 s{S_RT}, s{S_X}, 2")
    A.e(f"s_and_b32 s{S_T0}, s{S_J}, 3")
    A.e(f"s_add_u32 s{S_RT}, s{S_RT}, s{S_T0}")
    A.e(f"s_lshl_b32 s{S_RT}, s{S_RT}, 1")
    A.e(f"s_and_b32 s{S_T0}, s{S_GW}, 1")
    A.e(f"s_add_u32 s{S_RT}, s{S_RT}, s{S_T0}")
    A.e(f"s_lshr_b32 s{S_CT}, s{S_J}, 2")
    A.e(f"s_lshl_b32 s{S_CT}, s{S_CT}, 1")
    A.e(f"s_lshr_b32 s{S_T0}, s{S_GW}, 1")
    A.e(f"s_add_u32 s{S_CT}, s{S_CT}, s{S_T0}")
    A.e(f"s_lshl_b32 s{S_WOFF}, s{S_CT}, 6")
    A.e(f"s_mul_i32 s{S_HOFF}, s{S_RT}, {86*1024}")
    A.e(f"s_add_u32 s{S_HOFF}, s{S_HOFF}, {WS_H}")
    A.e(f"s_mul_i32 s{S_LDS}, s{S_GW}, {lds_stride}")
    A.e(f"s_add_u32 s{S_LDS}, s{S_LDS}, {lds_base}")
    A.e(f"v_lshlrev_b32 v{V_L16}, 4, v{V_L}")
    A.e(f"v_lshrrev_b32 v{V_T0}, 2, v{V_L}")
    A.e(f"v_and_b32 v{V_T1}, 3, v{V_L}")
    A.e(f"v_lshlrev_b32 v{V_D}, 10, v{V_T0}")
    A.e(f"v_lshl_add_u32 v{V_D}, v{V_T1}, 4, v{V_D}")
    tr_addr_perm(A, V_TR, V_L, V_T0, V_T1, 64)
    A.e(f"v_add_u32 v{V_TR}, s{S_LDS}, v{V_TR}")

    def w_dma(s):
        A.e(f"s_add_u32 m0, s{S_LDS}, {(s % DN_NS)*1024}")
        A.e(f"s_add_u32 s{S_T0}, s{S_WOFF}, {s*16384}")
        A.vmem(f"buffer_load_dwordx4 v{V_D}, {wd}, s{S_T0} offen lds", f"s{s}")

    def h_load(s):
        A.e(f"s_add_u32 s{S_T1}, s{S_HOFF}, {s*1024}")
        A.vmem(f"buffer_load_dwordx4 {vr(HF + (s % DN_NS)*4, 4)}, v{V_L16}, {ws}, s{S_T1} offen{load_flags}", f"s{s}")

    def tr_reads(s):
        ab = AF + (s % 2) * 4
        off = (s % DN_NS) * 1024
        A.e(f"ds_read_b64_tr_b16 {vr(ab,2)}, v{V_TR} offset:{off}")
        A.e(f"ds_read_b64_tr_b16 {vr(ab+2,2)}, v{V_TR} offset:{off + 512}")

    D = DN_NS - 1
    for s in range(D):
        w_dma(s)
        h_load(s)
    A.wait_vm("s0")
    tr_reads(0)
    for s in range(86):
        if s + 1 < 86:
            A.wait_vm(f"s{s+1}")
            tr_reads(s + 1)
            A.e("s_waitcnt lgkmcnt(2)")
        else:
            A.e("s_waitcnt lgkmcnt(0)")
        if s + D < 86:
            w_dma(s + D)
            h_load(s + D)
        A.e(mfma(ACC, AF + (s % 2) * 4, HF + (s % DN_NS) * 4, None if s == 0 else ACC))
    A.e(f"s_lshl_b32 s{S_T0}, s{S_RT}, 4")
    A.e(f"s_add_u32 s{S_T0}, s{S_T0}, s{S_CT}")
    A.e(f"s_lshl_b32 s{S_T0}, s{S_T0}, 11")
    A.e(f"s_add_u32 s{S_T0}, s{S_T0}, {WS_G}")
    A.e(f"s_mov_b32 s{S_T1}, {f32hex(-LOG2E)}")
    A.e("s_nop 7")
    for i in range(16):
        A.e(f"v_mul_f32 v{T+i}, s{S_T1}, v{ACC+i}")
    for i in range(16):
        A.e(f"v_exp_f32 v{T+i}, v{T+i}")
    for i in range(16):
        A.e(f"v_add_f32 v{T+i}, 1.0, v{T+i}")
    for i in range(16):
        A.e(f"v_rcp_f32 v{T+i}, v{T+i}")
    for i in range(16):
        A.e(f"v_mul_f32 v{ACC+i}, v{ACC+i}, v{T+i}")
    for i in range(8):
        A.e(f"v_cvt_pk_bf16_f32 v{T+i}, v{ACC+2*i}, v{ACC+2*i+1}")
    A.e(f"buffer_store_dwordx4 {vr(T,4)}, v{V_L16}, {ws}, s{S_T0} offen")
    A.e(f"buffer_store_dwordx4 {vr(T+4,4)}, v{V_L16}, {ws}, s{S_T0} offen offset:1024")


def tr_addr_perm(A, V_TR, V_L, V_T0, V_T1, rowbytes):
    sh = rowbytes.bit_length() - 1
    A.e(f"v_lshrrev_b32 v{V_T0}, 5, v{V_L}")
    A.e(f"v_bfe_u32 v{V_T1}, v{V_L}, 2, 2")
    A.e(f"v_lshl_add_u32 v{V_T0}, v{V_T0}, 2, v{V_T1}")
    A.e(f"v_lshlrev_b32 v{V_TR}, {sh}, v{V_T0}")
    A.e(f"v_and_b32 v{V_T0}, 1, v{V_L}")
    A.e(f"v_lshl_add_u32 v{V_TR}, v{V_T0}, 5, v{V_TR}")
    A.e(f"v_bfe_u32 v{V_T0}, v{V_L}, 4, 1")
    A.e(f"v_lshl_add_u32 v{V_TR}, v{V_T0}, 4, v{V_TR}")
    A.e(f"v_bfe_u32 v{V_T0}, v{V_L}, 1, 1")
    A.e(f"v_lshl_add_u32 v{V_TR}, v{V_T0}, 3, v{V_TR}")


def _prolog(A, name):
    kernel_begin(A, name)
    A.e("s_cmp_ge_u32 s2, 256")
    A.e(f"s_cbranch_scc1 {name}_end")
    A.e("s_load_dwordx4 s[4:7], s[0:1], 48")
    A.e("s_load_dwordx2 s[8:9], s[0:1], 64")
    A.e("s_load_dwordx2 s[12:13], s[0:1], 88")
    A.e("v_lshrrev_b32 v2, 6, v0")
    A.e("s_and_b32 s35, s2, 7")
    A.e("v_readfirstlane_b32 s32, v2")
    A.e("s_lshr_b32 s36, s2, 3")
    A.e("s_waitcnt lgkmcnt(0)")
    srd(A, 16, 4, 512 * 2752)
    srd(A, 20, 6, 512 * 2752)
    srd(A, 24, 8, 1376 * 1024)
    srd(A, 28, 12, WS_SIZE)

def gen_kgu(name="kgu_kernel"):
    A = Asm()
    _prolog(A, name)
    gen_gateup_wave(A, name, 28, 16, 20, 32, 35, 36, 0)
    A.label(f"{name}_end")
    A.e("s_endpgm")
    return A.text(), kernel_desc(name, 256), f"; @launch kernel={name} grid=(256,1,1) block=(256,1,1) lds={4*GU_LDS_PER_WAVE}"

def gen_kd(name="kd_kernel"):
    A = Asm()
    _prolog(A, name)
    gen_down_wave(A, name, 28, 24, 32, 35, 36, 0, DN_LDS_PER_WAVE)
    A.label(f"{name}_end")
    A.e("s_endpgm")
    return A.text(), kernel_desc(name, 256), f"; @launch kernel={name} grid=(256,1,1) block=(256,1,1) lds=98304"
```

```python
from asmlib import *
from layout import *

K1_XNL = 0
K1_KV = 33792
K1_RING = 50176
K1_SLOTS = 6
K1_LDS = K1_RING + K1_SLOTS * 16384

def dpp_reduce16(A, v, tmp=None):
    for r in (8, 4, 2, 1):
        A.e("s_nop 1")
        A.e(f"v_add_f32_dpp v{v}, v{v}, v{v} row_ror:{r} row_mask:0xf bank_mask:0xf")

def bf16_round(A, v):
    A.e(f"v_cvt_pk_bf16_f32 v{v}, v{v}, v{v}")
    A.e(f"v_lshlrev_b32 v{v}, 16, v{v}")

def gen_k1(name="k1_kernel"):
    A = Asm()
    kernel_begin(A, name)
    S_X, S_WQ, S_KVW, S_WS = 16, 20, 24, 28
    S_W, S_RT, S_G, S_T0, S_T1, S_QOFF, S_LDSW = 32, 33, 34, 35, 36, 37, 38
    A.e("s_cmp_ge_u32 s2, 256")
    A.e(f"s_cbranch_scc1 {name}_end")
    A.e("s_load_dwordx8 s[4:11], s[0:1], 0")
    A.e("s_load_dwordx2 s[12:13], s[0:1], 88")
    A.e("v_lshrrev_b32 v2, 6, v0")
    A.e("v_and_b32 v1, 63, v0")
    A.e(f"v_readfirstlane_b32 s{S_W}, v2")
    A.e(f"s_and_b32 s{S_T0}, s2, 7")
    A.e(f"s_lshr_b32 s{S_T1}, s2, 3")
    A.e(f"s_lshr_b32 s{S_G}, s{S_T1}, 3")
    A.e(f"s_and_b32 s{S_T1}, s{S_T1}, 7")
    A.e(f"s_lshl_b32 s{S_RT}, s{S_T0}, 3")
    A.e(f"s_add_u32 s{S_RT}, s{S_RT}, s{S_T1}")
    A.e("v_lshrrev_b32 v3, 4, v0")
    A.e("v_and_b32 v4, 15, v0")
    A.e("v_lshlrev_b32 v5, 10, v3")
    A.e("v_lshl_add_u32 v5, v4, 4, v5")
    A.e("v_lshrrev_b32 v7, 4, v1")
    A.e("v_lshrrev_b32 v8, 2, v4")
    A.e("v_xor_b32 v8, v8, v7")
    A.e("v_and_b32 v9, 3, v4")
    A.e("v_lshl_add_u32 v8, v8, 2, v9")
    A.e("v_lshlrev_b32 v6, 10, v7")
    A.e("v_lshl_add_u32 v6, v8, 4, v6")
    A.e("v_lshlrev_b32 v10, 4, v1")
    A.e(f"s_lshl_b32 s{S_T0}, s{S_RT}, 15")
    A.e(f"s_lshl_b32 s{S_QOFF}, s{S_G}, 8")
    A.e(f"s_lshl_b32 s{S_T1}, s{S_W}, 13")
    A.e(f"s_add_u32 s{S_QOFF}, s{S_QOFF}, s{S_T1}")
    A.e(f"s_lshl_b32 s{S_LDSW}, s{S_W}, 11")
    A.e(f"s_add_u32 s{S_LDSW}, s{S_LDSW}, {K1_RING}")
    A.e("s_waitcnt lgkmcnt(0)")
    srd(A, S_X, 4, 2048 * 1024)
    for q in range(4):
        A.vmem(f"buffer_load_dwordx4 v[{16+4*q}:{19+4*q}], v5, s[{S_X}:{S_X+3}], s{S_T0} offen offset:{q*256}", "x")
    srd(A, S_WQ, 6, 512 * 1024)
    srd(A, S_WS, 12, WS_SIZE)
    A.e(f"s_cmp_eq_u32 s{S_G}, 0")
    A.e(f"s_cselect_b32 s{S_KVW}, s8, s10")
    A.e(f"s_cselect_b32 s{S_KVW+1}, s9, s11")
    A.e(f"s_mov_b32 s{S_KVW+2}, {512*32}")
    A.e(f"s_mov_b32 s{S_KVW+3}, 0x00020000")

    def q_dma(A, c):
        slot = c % K1_SLOTS
        for e in range(2):
            A.e(f"s_add_u32 m0, s{S_LDSW}, {slot*16384 + e*1024}")
            A.e(f"s_add_u32 s{S_T1}, s{S_QOFF}, {c*65536 + e*4096}")
            A.vmem(f"buffer_load_dwordx4 v6, s[{S_WQ}:{S_WQ+3}], s{S_T1} offen lds", f"q{c}")

    def ln(A):
        A.wait_vm("x")
        for d in range(16):
            A.e(f"v_lshlrev_b32 v{32+2*d}, 16, v{16+d}")
            A.e(f"v_and_b32 v{33+2*d}, 0xffff0000, v{16+d}")
        A.e("v_pk_add_f32 v[12:13], v[32:33], v[34:35]")
        A.e("v_pk_add_f32 v[14:15], v[36:37], v[38:39]")
        for d in range(4, 16, 2):
            A.e(f"v_pk_add_f32 v[12:13], v[12:13], v[{32+2*d}:{33+2*d}]")
            A.e(f"v_pk_add_f32 v[14:15], v[14:15], v[{34+2*d}:{35+2*d}]")
        A.e("v_pk_add_f32 v[12:13], v[12:13], v[14:15]")
        A.e("v_add_f32 v12, v12, v13")
        dpp_reduce16(A, 12)
        A.e(f"v_mul_f32 v12, {f32hex(1.0/512)}, v12")
        A.e("v_mov_b32 v14, v12")
        bf16_round(A, 14)
        A.e("v_sub_f32 v11, v12, v14")
        for d in range(16):
            A.e(f"v_pk_add_f32 v[{32+2*d}:{33+2*d}], v[{32+2*d}:{33+2*d}], v[14:15] op_sel_hi:[1,0] neg_lo:[0,1] neg_hi:[0,1]")
        A.e("v_pk_mul_f32 v[12:13], v[32:33], v[32:33]")
        A.e("v_pk_mul_f32 v[14:15], v[34:35], v[34:35]")
        for d in range(2, 16, 2):
            A.e(f"v_pk_fma_f32 v[12:13], v[{32+2*d}:{33+2*d}], v[{32+2*d}:{33+2*d}], v[12:13]")
            A.e(f"v_pk_fma_f32 v[14:15], v[{34+2*d}:{35+2*d}], v[{34+2*d}:{35+2*d}], v[14:15]")
        A.e("v_pk_add_f32 v[12:13], v[12:13], v[14:15]")
        A.e("v_add_f32 v12, v12, v13")
        dpp_reduce16(A, 12)
        A.e(f"v_mul_f32 v12, {f32hex(1.0/512)}, v12")
        A.e("v_fma_f32 v12, -v11, v11, v12")
        A.e("v_max_f32 v12, 0, v12")
        bf16_round(A, 12)
        A.e(f"v_add_f32 v12, {f32hex(1e-5)}, v12")
        bf16_round(A, 12)
        A.e("v_sqrt_f32 v12, v12")
        A.e("s_nop 0")
        bf16_round(A, 12)
        A.e("v_rcp_f32 v12, v12")
        A.e("v_mul_u32_u24 v11, 528, v4")
        A.e("v_lshl_add_u32 v11, v3, 4, v11")
        for d in range(16):
            A.e(f"v_pk_mul_f32 v[{32+2*d}:{33+2*d}], v[{32+2*d}:{33+2*d}], v[12:13] op_sel_hi:[1,0]")
        for d in range(16):
            A.e(f"v_cvt_pk_bf16_f32 v{16+d}, v{32+2*d}, v{33+2*d}")
        for q in range(4):
            A.e(f"ds_write_b128 v11, v[{16+4*q}:{19+4*q}] offset:{K1_XNL + q*16*528}")
        A.e("v_lshrrev_b32 v14, 5, v1")
        A.e("v_and_b32 v15, 31, v1")
        A.e("v_mul_u32_u24 v13, 528, v14")
        A.e("v_lshl_add_u32 v13, v15, 4, v13")
        A.e("s_waitcnt lgkmcnt(0)")

    def chunk_head(A, c):
        A.wait_vm(f"q{c}")
        A.e("s_barrier")
        if c in (1, 2):
            q_dma(A, c + 5)

    ACC, BF, AF = 64, 80, 96
    lab_kv, lab_other = f"{name}_kv", f"{name}_other"
    A.e(f"s_cmp_eq_u32 s{S_W}, 4")
    A.e(f"s_cselect_b32 s{S_T1}, 1, 0")
    A.e(f"s_cmp_lt_u32 s{S_G}, 2")
    A.e(f"s_cselect_b32 s{S_T1}, s{S_T1}, 0")
    A.e(f"s_cmp_eq_u32 s{S_T1}, 1")
    A.e(f"s_cbranch_scc1 {lab_kv}")
    vm0 = list(A.vm)
    for c in range(K1_SLOTS):
        q_dma(A, c)
    ln(A)
    A.e(f"s_cmp_ge_u32 s{S_W}, 4")
    A.e(f"s_cbranch_scc1 {lab_other}")
    vm1 = list(A.vm)

    A.e("v_lshrrev_b32 v7, 2, v4")
    A.e("v_and_b32 v8, 3, v4")
    A.e("v_lshl_add_u32 v9, v14, 3, v7")
    A.e("v_lshlrev_b32 v12, 8, v9")
    A.e(f"v_xor_b32 v7, s{S_W}, v7")
    A.e("v_lshl_add_u32 v12, v7, 6, v12")
    A.e("v_bfe_u32 v7, v1, 4, 1")
    A.e("v_lshl_add_u32 v12, v7, 5, v12")
    A.e("v_lshl_add_u32 v12, v8, 3, v12")
    A.e(f"v_add_u32 v12, {K1_RING}, v12")
    A.e("v_add_u32 v11, 49152, v12")
    for c in range(8):
        chunk_head(A, c)
        slot = c % K1_SLOTS
        areg, aoff = (12, slot * 16384) if slot < 3 else (11, (slot - 3) * 16384)
        for k in range(4):
            ks = 4 * c + k
            A.e(f"ds_read_b128 v[{BF+4*k}:{BF+4*k+3}], v13 offset:{K1_XNL + ks*1056}")
            A.e(f"ds_read_b64_tr_b16 v[{AF+4*k}:{AF+4*k+1}], v{areg} offset:{aoff + k*4096}")
            A.e(f"ds_read_b64_tr_b16 v[{AF+4*k+2}:{AF+4*k+3}], v{areg} offset:{aoff + k*4096 + 1024}")
        for k in range(4):
            A.e(f"s_waitcnt lgkmcnt({9-3*k})")
            A.e(mfma(ACC, AF + 4*k, BF + 4*k, None if (c == 0 and k == 0) else ACC))
    A.e(f"s_lshl_b32 s{S_T0}, s{S_RT}, 5")
    A.e(f"s_lshl_b32 s{S_T1}, s{S_G}, 3")
    A.e(f"s_add_u32 s{S_T0}, s{S_T0}, s{S_T1}")
    A.e(f"s_lshl_b32 s{S_T1}, s{S_W}, 1")
    A.e(f"s_add_u32 s{S_T0}, s{S_T0}, s{S_T1}")
    A.e(f"s_lshl_b32 s{S_T0}, s{S_T0}, 10")
    A.e(f"s_add_u32 s{S_T0}, s{S_T0}, {WS_Q}")
    A.e(f"s_mov_b32 s{S_T1}, {f32hex(QSCALE)}")
    A.e("s_nop 7")
    for i in range(16):
        A.e(f"v_mul_f32 v{ACC+i}, s{S_T1}, v{ACC+i}")
    for i in range(8):
        A.e(f"v_cvt_pk_bf16_f32 v{BF+i}, v{ACC+2*i}, v{ACC+2*i+1}")
    A.e(f"buffer_store_dwordx4 v[{BF}:{BF+3}], v10, s[{S_WS}:{S_WS+3}], s{S_T0} offen")
    A.e(f"buffer_store_dwordx4 v[{BF+4}:{BF+7}], v10, s[{S_WS}:{S_WS+3}], s{S_T0} offen offset:1024")
    A.e("s_endpgm")

    A.label(lab_other)
    A.vm = list(vm1)
    chunk_head(A, 0)
    lab_skip = f"{name}_noxn"
    A.e(f"s_lshl_b32 s{S_T0}, s{S_G}, 3")
    A.e(f"s_and_b32 s{S_T1}, s{S_W}, 1")
    A.e(f"s_lshl_b32 s{S_T1}, s{S_T1}, 2")
    A.e(f"s_add_u32 s{S_T0}, s{S_T0}, s{S_T1}")
    A.e(f"s_mul_i32 s{S_T1}, s{S_T0}, 1056")
    A.e(f"v_add_u32 v12, s{S_T1}, v13")
    A.e(f"s_lshl_b32 s39, s{S_RT}, 5")
    A.e(f"s_add_u32 s39, s39, s{S_T0}")
    A.e(f"s_lshl_b32 s39, s39, 10")
    for k in range(4):
        A.e(f"ds_read_b128 v[{BF+4*k}:{BF+4*k+3}], v12 offset:{K1_XNL + k*1056}")
    for c in range(1, 8):
        chunk_head(A, c)
        if c == 3:
            A.e(f"s_cmp_lt_u32 s{S_W}, 6")
            A.e(f"s_cbranch_scc1 {lab_skip}")
            A.e("s_waitcnt lgkmcnt(0)")
            for k in range(4):
                A.e(f"buffer_store_dwordx4 v[{BF+4*k}:{BF+4*k+3}], v10, s[{S_WS}:{S_WS+3}], s39 offen offset:{k*1024}")
            A.label(lab_skip)
    A.e("s_endpgm")

    A.label(lab_kv)
    A.vm = list(vm0)
    for n in range(16):
        if n % 4 == 0:
            A.e(f"s_mov_b32 m0, {K1_KV + n*1024}")
            A.e(f"s_mov_b32 s{S_T1}, {n*1024}")
        A.vmem(f"buffer_load_dwordx4 v10, s[{S_KVW}:{S_KVW+3}], s{S_T1} offen offset:{(n%4)*1024} lds", "kv")
    for c in range(K1_SLOTS):
        q_dma(A, c)
    ln(A)
    A.e("v_lshrrev_b32 v7, 2, v4")
    A.e("v_and_b32 v8, 3, v4")
    A.e("v_lshl_add_u32 v9, v14, 3, v7")
    A.e("v_lshlrev_b32 v12, 5, v9")
    A.e("v_lshl_add_u32 v12, v8, 3, v12")
    lab_v = f"{name}_vpath"
    A.e(f"s_cmp_eq_u32 s{S_G}, 1")
    A.e(f"s_cbranch_scc1 {lab_v}")
    vm2 = list(A.vm)
    for mode in ("k", "v"):
        if mode == "v":
            A.label(lab_v)
            A.vm = list(vm2)
        for c in range(8):
            chunk_head(A, c)
            for k in range(4):
                ks = 4 * c + k
                A.e(f"ds_read_b128 v[{BF+4*k}:{BF+4*k+3}], v13 offset:{K1_XNL + ks*1056}")
                A.e(f"ds_read_b64_tr_b16 v[{AF+4*k}:{AF+4*k+1}], v12 offset:{K1_KV + ks*512}")
                A.e(f"ds_read_b64_tr_b16 v[{AF+4*k+2}:{AF+4*k+3}], v12 offset:{K1_KV + ks*512 + 128}")
            for k in range(4):
                A.e(f"s_waitcnt lgkmcnt({9-3*k})")
                cc = None if (c == 0 and k == 0) else ACC
                if mode == "k":
                    A.e(mfma(ACC, AF + 4*k, BF + 4*k, cc))
                else:
                    A.e(mfma(ACC, BF + 4*k, AF + 4*k, cc))
        A.e(f"s_lshl_b32 s{S_T0}, s{S_RT}, 10")
        A.e(f"s_add_u32 s{S_T0}, s{S_T0}, {WS_K if mode == 'k' else WS_V}")
        A.e("v_lshl_add_u32 v9, v14, 4, v4")
        A.e("v_lshlrev_b32 v9, 4, v9")
        A.e("s_nop 15")
        if mode == "k":
            for i in range(4):
                A.e(f"v_cvt_pk_bf16_f32 v{BF+i}, v{ACC+2*i}, v{ACC+2*i+1}")
            A.e(f"buffer_store_dwordx4 v[{BF}:{BF+3}], v10, s[{S_WS}:{S_WS+3}], s{S_T0} offen")
        else:
            for i in range(8):
                A.e(f"v_cvt_pk_bf16_f32 v{BF+i}, v{ACC+2*i}, v{ACC+2*i+1}")
            A.e("s_mov_b32 exec_lo, 0x0000ffff")
            A.e("s_mov_b32 exec_hi, 0x0000ffff")
            A.e(f"buffer_store_dwordx4 v[{BF}:{BF+3}], v9, s[{S_WS}:{S_WS+3}], s{S_T0} offen")
            A.e(f"buffer_store_dwordx4 v[{BF+4}:{BF+7}], v9, s[{S_WS}:{S_WS+3}], s{S_T0} offen offset:512")
        A.e("s_endpgm")
    A.label(f"{name}_end")
    A.e("s_endpgm")
    return A.text(), kernel_desc(name, 112), f"; @launch kernel={name} grid=(256,1,1) block=(512,1,1) lds={K1_LDS}"
```

```python
from asmlib import *
from layout import *

K2_ACC = 0
K2_ACC_SZ = 8 * 9 * 256

KR, VR, S0, S1, OR, QR, QN = 0, 64, 192, 208, 224, 240, 244
V_LANE16, V_ACC, V_VOFF, V_T0, V_T1, V_T2 = 248, 249, 250, 251, 252, 253
NT = 16

def att_stream(A, t, first_pass, pass_start_adds, last_tile_in_kernel=False, waits=None, qswitch=None):
    S = S0 if t % 2 == 0 else S1
    Sp = S1 if t % 2 == 0 else S0
    e = lambda i: f"v_exp_f32 v{S+i}, v{S+i}"
    c = lambda j: f"v_cvt_pk_bf16_f32 v{S + (j if j < 4 else 4 + j)}, v{S+2*j}, v{S+2*j+1}"
    pos = [2, 6, 11]
    if t == 0 and pass_start_adds:
        pos = [2, 6, 13]
    cv_after = {3: 0, 5: 1, 7: 2, 8: 3, 11: 4, 13: 5, 15: 6}
    for i in range(16):
        if i == pos[0] and not (t == 0 and first_pass):
            A.e(mfma(OR, VR + 8 * ((t - 1) % NT) + 4, Sp + 8, OR))
        if i == pos[1]:
            if waits: waits("k", (t + 1) % NT)
            A.e(mfma(Sp, KR + 4 * ((t + 1) % NT), QR))
            if t == NT - 2 and qswitch: qswitch()
        if i == pos[2]:
            if t == 0 and pass_start_adds:
                for r in range(9):
                    A.e(f"ds_add_f32 v{V_ACC}, v{OR+r} offset:{r*256}")
                A.e(f"v_add_u32 v{V_ACC}, {9*256}, v{V_ACC}")
            if waits: waits("v", t)
            A.e(mfma(OR, VR + 8 * t, S, None if t == 0 else OR))
        A.e(e(i))
        if i in cv_after:
            A.e(c(cv_after[i]))
    A.e(c(7))

def gen_attention_body(A, name, S_WS, S_W, S_RT, S_HG, nwaves_total):
    S_T0, S_T1, S_Q, S_CNT, S_KO, S_VO = 40, 41, 42, 43, 44, 45
    ws = f"s[{S_WS}:{S_WS+3}]"
    A.e(f"v_and_b32 v{V_T0}, 63, v0")
    A.e(f"v_lshlrev_b32 v{V_LANE16}, 4, v{V_T0}")
    A.e(f"v_lshlrev_b32 v{V_ACC}, 2, v{V_T0}")
    A.e(f"v_lshrrev_b32 v{V_T1}, 5, v{V_T0}")
    A.e(f"v_and_b32 v{V_T2}, 15, v{V_T0}")
    A.e(f"v_lshl_add_u32 v{V_VOFF}, v{V_T1}, 4, v{V_T2}")
    A.e(f"v_lshlrev_b32 v{V_VOFF}, 4, v{V_VOFF}")
    A.e(f"s_lshl_b32 s{S_Q}, s{S_RT}, 5")
    A.e(f"s_lshl_b32 s{S_T0}, s{S_HG}, 3")
    A.e(f"s_add_u32 s{S_Q}, s{S_Q}, s{S_T0}")
    A.e(f"s_lshl_b32 s{S_Q}, s{S_Q}, 10")
    A.e(f"s_add_u32 s{S_Q}, s{S_Q}, {WS_Q}")
    A.e(f"s_lshl_b32 s{S_KO}, s{S_W}, 14")
    A.e(f"s_add_u32 s{S_VO}, s{S_KO}, {WS_V}")
    A.e(f"s_add_u32 s{S_KO}, s{S_KO}, {WS_K}")
    A.vmem(f"buffer_load_dwordx4 {vr(QR,4)}, v{V_LANE16}, {ws}, s{S_Q} offen", "q")
    for grp in range(4):
        A.e(f"s_add_u32 s{S_T0}, s{S_KO}, {grp*4096}")
        for i in range(4):
            t = 4 * grp + i
            A.vmem(f"buffer_load_dwordx4 {vr(KR+4*t,4)}, v{V_LANE16}, {ws}, s{S_T0} offen offset:{i*1024}", f"k{t}")
        A.e(f"s_add_u32 s{S_T0}, s{S_VO}, {grp*4096}")
        A.e("s_mov_b32 exec_lo, 0x0000ffff")
        A.e("s_mov_b32 exec_hi, 0x0000ffff")
        for i in range(8):
            t = 4 * grp + i // 2
            A.vmem(f"buffer_load_dwordx4 {vr(VR+16*2*grp+4*i,4)}, v{V_VOFF}, {ws}, s{S_T0} offen offset:{i*512}", f"v{t}")
        A.e("s_mov_b64 exec, -1")
    A.vmem(f"buffer_load_dwordx4 {vr(QN,4)}, v{V_LANE16}, {ws}, s{S_Q} offen offset:1024", "qn")
    A.e("s_mov_b32 exec_lo, 0xffff0000")
    A.e("s_mov_b32 exec_hi, 0xffff0000")
    for r in range(128):
        A.e(f"v_mov_b32 v{VR+r}, 0x3f803f80")
    A.e("s_mov_b64 exec, -1")
    A.e(f"v_mov_b32 v{S0}, 0")
    A.e(f"v_mov_b32 v{S0+1}, 0")
    A.e(f"s_mul_i32 s{S_T0}, s{S_W}, 4608")
    A.e(f"v_lshlrev_b32 v{V_T1}, 3, v{V_T0}")
    A.e(f"v_add_u32 v{V_T1}, s{S_T0}, v{V_T1}")
    for i in range(9):
        A.e(f"ds_write_b64 v{V_T1}, v[{S0}:{S0+1}] offset:{K2_ACC + i*512}")
    A.e("s_waitcnt lgkmcnt(0)")
    A.e("s_barrier")
    A.wait_vm("k0")
    A.e(mfma(S0, KR, QR))
    A.e(f"s_add_u32 s{S_Q}, s{S_Q}, 2048")
    A.e(f"s_mov_b32 s{S_CNT}, 7")
    A.e("s_nop 10")

    def waits(kind, t):
        tag = f"{kind}{t}"
        if tag in A.vm:
            A.wait_vm(tag)

    def qswitch():
        A.e("s_waitcnt vmcnt(0)")
        for i in range(4):
            A.e(f"v_mov_b32 v{QR+i}, v{QN+i}")
        A.e(f"buffer_load_dwordx4 {vr(QN,4)}, v{V_LANE16}, {ws}, s{S_Q} offen")
        A.e(f"s_add_u32 s{S_Q}, s{S_Q}, 1024")

    for t in range(NT):
        att_stream(A, t, True, False, waits=waits, qswitch=qswitch)
    A.vm = []
    loop = f"{name}_att_loop"
    A.label(loop)
    for t in range(NT):
        att_stream(A, t, False, True, qswitch=qswitch)
    A.e(f"s_sub_u32 s{S_CNT}, s{S_CNT}, 1")
    A.e(f"s_cmp_lg_u32 s{S_CNT}, 0")
    A.e(f"s_cbranch_scc1 {loop}")
    A.e("s_nop 1")
    A.e(mfma(OR, VR + 8 * (NT - 1) + 4, S1 + 8, OR))
    A.e("s_nop 15")
    for r in range(9):
        A.e(f"ds_add_f32 v{V_ACC}, v{OR+r} offset:{r*256}")
    A.e("s_waitcnt vmcnt(0) lgkmcnt(0)")
    A.e("s_barrier")
    A.e(f"s_mul_i32 s{S_T0}, s{S_W}, 4608")
    A.e(f"v_lshrrev_b32 v{V_ACC}, 2, v{V_LANE16}")
    A.e(f"v_add_u32 v{V_ACC}, s{S_T0}, v{V_ACC}")
    A.e(f"s_lshl_b32 s{S_Q}, s{S_RT}, 5")
    A.e(f"s_lshl_b32 s{S_T0}, s{S_HG}, 3")
    A.e(f"s_add_u32 s{S_Q}, s{S_Q}, s{S_T0}")
    A.e(f"s_lshl_b32 s{S_T0}, s{S_W}, 1")
    A.e(f"s_add_u32 s{S_Q}, s{S_Q}, s{S_T0}")
    A.e(f"s_lshl_b32 s{S_Q}, s{S_Q}, 10")
    for j in range(2):
        for r in range(9):
            A.e(f"ds_read_b32 v{16*j+r}, v{V_ACC} offset:{K2_ACC + j*2304 + r*256}")
        A.e("s_waitcnt lgkmcnt(0)")
    A.e(f"s_mov_b32 s{S_CNT}, 0")
    fin = f"{name}_fin"
    slow = f"{name}_slow"
    done1 = f"{name}_fin_store"
    A.label(fin)
    A.e(f"v_mov_b32 v{V_T0}, {f32hex(2.0**-60)}")
    A.e(f"v_mov_b32 v{V_T1}, {f32hex(2.0**60)}")
    A.e(f"v_cmp_gt_f32 vcc, v8, v{V_T0}")
    A.e(f"v_cmp_lt_f32 s[46:47], v8, v{V_T1}")
    A.e("s_and_b64 vcc, vcc, s[46:47]")
    A.e("s_cmp_eq_u64 vcc, -1")
    A.e(f"s_cbranch_scc0 {slow}")
    A.label(done1)
    A.e("v_rcp_f32 v8, v8")
    A.e("s_nop 0")
    for r in range(8):
        A.e(f"v_mul_f32 v{r}, v{r}, v8")
    for i in range(4):
        A.e(f"v_cvt_pk_bf16_f32 v{12+i}, v{2*i}, v{2*i+1}")
    A.e(f"s_add_u32 s{S_T0}, s{S_Q}, {WS_O}")
    A.e(f"buffer_store_dwordx4 v[12:15], v{V_LANE16}, {ws}, s{S_T0} offen")
    A.e(f"s_cmp_eq_u32 s{S_CNT}, 1")
    A.e(f"s_cbranch_scc1 {name}_att_end")
    A.e(f"s_mov_b32 s{S_CNT}, 1")
    A.e(f"s_add_u32 s{S_Q}, s{S_Q}, 1024")
    for r in range(9):
        A.e(f"v_mov_b32 v{r}, v{16+r}")
    A.e(f"s_branch {fin}")
    A.label(f"{name}_att_end")
    A.e("s_endpgm")

    A.label(slow)
    SQ, SK, SS, SC, SO, SM = 32, 36, 192, 208, 224, 40
    A.e(f"s_add_u32 s{S_T0}, s{S_Q}, {WS_Q}")
    A.e(f"buffer_load_dwordx4 {vr(SQ,4)}, v{V_LANE16}, {ws}, s{S_T0} offen")
    A.e(f"v_mov_b32 v{SM}, 0xff800000")
    A.e(f"s_mov_b32 s{S_T0}, {WS_K}")
    l1 = f"{name}_slow1"
    A.label(l1)
    A.e(f"buffer_load_dwordx4 {vr(SK,4)}, v{V_LANE16}, {ws}, s{S_T0} offen")
    A.e("s_waitcnt vmcnt(0)")
    A.e(mfma(SS, SK, SQ))
    A.e("s_nop 15")
    for i in range(8):
        A.e(f"v_max3_f32 v{SM}, v{SS+2*i}, v{SS+2*i+1}, v{SM}")
    A.e(f"s_add_u32 s{S_T0}, s{S_T0}, 1024")
    A.e(f"s_cmp_lt_u32 s{S_T0}, {WS_K + 65536}")
    A.e(f"s_cbranch_scc1 {l1}")
    A.e(f"v_mov_b32 v{SM+1}, v{SM}")
    A.e("s_nop 1")
    A.e(f"v_permlane32_swap_b32 v{SM}, v{SM+1}")
    A.e("s_nop 1")
    A.e(f"v_max_f32 v{SM}, v{SM}, v{SM+1}")
    for i in range(16):
        A.e(f"v_sub_f32 v{SC+i}, 0, v{SM}")
        A.e(f"v_mov_b32 v{SO+i}, 0")
    A.e(f"s_mov_b32 s{S_T0}, 0")
    l2 = f"{name}_slow2"
    A.label(l2)
    A.e(f"s_add_u32 s{S_T1}, s{S_T0}, {WS_K}")
    A.e(f"buffer_load_dwordx4 {vr(SK,4)}, v{V_LANE16}, {ws}, s{S_T1} offen")
    A.e(f"s_add_u32 s{S_T1}, s{S_T0}, {WS_V}")
    A.e("s_mov_b32 exec_lo, 0x0000ffff")
    A.e("s_mov_b32 exec_hi, 0x0000ffff")
    A.e(f"buffer_load_dwordx4 {vr(VR,4)}, v{V_VOFF}, {ws}, s{S_T1} offen")
    A.e(f"buffer_load_dwordx4 {vr(VR+4,4)}, v{V_VOFF}, {ws}, s{S_T1} offen offset:512")
    A.e("s_mov_b64 exec, -1")
    A.e("s_waitcnt vmcnt(0)")
    A.e(mfma(SS, SK, SQ, SC))
    A.e("s_nop 15")
    for i in range(16):
        A.e(f"v_exp_f32 v{SS+i}, v{SS+i}")
    A.e("s_nop 0")
    for j in range(8):
        A.e(f"v_cvt_pk_bf16_f32 v{44+j}, v{SS+2*j}, v{SS+2*j+1}")
    A.e("s_nop 1")
    A.e(mfma(SO, VR, 44, SO))
    A.e(mfma(SO, VR + 4, 48, SO))
    A.e("s_nop 15")
    A.e(f"s_add_u32 s{S_T0}, s{S_T0}, 1024")
    A.e(f"s_cmp_lt_u32 s{S_T0}, 65536")
    A.e(f"s_cbranch_scc1 {l2}")
    for r in range(9):
        A.e(f"v_mov_b32 v{r}, v{SO+r}")
    A.e(f"s_branch {done1}")


def gen_k2(name="k2_kernel"):
    A = Asm()
    kernel_begin(A, name)
    S_WS, S_W, S_RT, S_HG = 28, 32, 33, 34
    A.e("s_cmp_ge_u32 s2, 256")
    A.e(f"s_cbranch_scc1 {name}_end")
    A.e("s_load_dwordx2 s[12:13], s[0:1], 88")
    A.e("v_lshrrev_b32 v2, 6, v0")
    A.e("s_and_b32 s35, s2, 7")
    A.e(f"v_readfirstlane_b32 s{S_W}, v2")
    A.e("s_lshr_b32 s36, s2, 3")
    A.e(f"s_lshr_b32 s{S_HG}, s36, 3")
    A.e("s_and_b32 s36, s36, 7")
    A.e(f"s_lshl_b32 s{S_RT}, s35, 3")
    A.e(f"s_add_u32 s{S_RT}, s{S_RT}, s36")
    A.e("s_waitcnt lgkmcnt(0)")
    srd(A, S_WS, 12, WS_SIZE)
    gen_attention_body(A, name, S_WS, S_W, S_RT, S_HG, 4)
    A.label(f"{name}_end")
    A.e("s_endpgm")
    return A.text(), kernel_desc(name, 256), f"; @launch kernel={name} grid=(256,1,1) block=(256,1,1) lds={K2_ACC_SZ}"
```

```python
from asmlib import *
from layout import *
from ffn import tr_addr_perm

K3_O = 0
K3_W = 65536
K3_LDS = 131072

def gen_k3(name="k3_kernel"):
    A = Asm()
    kernel_begin(A, name)
    S_X, S_WO, S_OUT, S_WS = 16, 20, 24, 28
    S_W, S_RB, S_CB, S_T0, S_T1, S_OOFF, S_WOFF, S_RT, S_CT = range(32, 41)
    ws = f"s[{S_WS}:{S_WS+3}]"
    A.e("s_cmp_ge_u32 s2, 256")
    A.e(f"s_cbranch_scc1 {name}_end")
    A.e("s_load_dwordx2 s[4:5], s[0:1], 0")
    A.e("s_load_dwordx2 s[6:7], s[0:1], 32")
    A.e("s_load_dwordx2 s[8:9], s[0:1], 72")
    A.e("s_load_dwordx2 s[12:13], s[0:1], 88")
    A.e("v_lshrrev_b32 v2, 6, v0")
    A.e("v_and_b32 v1, 63, v0")
    A.e(f"v_readfirstlane_b32 s{S_W}, v2")
    A.e(f"s_and_b32 s{S_T0}, s2, 7")
    A.e(f"s_lshr_b32 s{S_T1}, s2, 3")
    A.e(f"s_lshr_b32 s{S_CB}, s{S_T1}, 2")
    A.e(f"s_and_b32 s{S_T1}, s{S_T1}, 3")
    A.e(f"s_lshl_b32 s{S_RB}, s{S_T0}, 2")
    A.e(f"s_add_u32 s{S_RB}, s{S_RB}, s{S_T1}")
    A.e("v_lshlrev_b32 v3, 4, v1")
    A.e("v_lshrrev_b32 v5, 3, v1")
    A.e("v_and_b32 v6, 7, v1")
    A.e("v_bfe_u32 v7, v1, 4, 1")
    A.e("v_lshlrev_b32 v7, 2, v7")
    A.e("v_xor_b32 v6, v6, v7")
    A.e("v_lshlrev_b32 v4, 10, v5")
    A.e("v_lshl_add_u32 v4, v6, 4, v4")
    A.e(f"s_and_b32 s{S_T0}, s{S_W}, 1")
    A.e(f"s_lshl_b32 s{S_RT}, s{S_RB}, 1")
    A.e(f"s_add_u32 s{S_RT}, s{S_RT}, s{S_T0}")
    A.e(f"s_lshr_b32 s{S_T0}, s{S_W}, 1")
    A.e(f"s_lshl_b32 s{S_CT}, s{S_CB}, 1")
    A.e(f"s_add_u32 s{S_CT}, s{S_CT}, s{S_T0}")
    A.e(f"s_lshl_b32 s{S_OOFF}, s{S_RT}, 15")
    A.e(f"s_lshl_b32 s{S_T0}, s{S_T0}, 12")
    A.e(f"s_add_u32 s{S_OOFF}, s{S_OOFF}, s{S_T0}")
    A.e(f"s_add_u32 s{S_OOFF}, s{S_OOFF}, {WS_O}")
    A.e(f"s_and_b32 s41, s{S_W}, 1")
    A.e(f"s_lshl_b32 s41, s41, 15")
    A.e(f"s_add_u32 s41, s41, s{S_T0}")
    A.e(f"s_lshl_b32 s{S_WOFF}, s{S_W}, 15")
    A.e(f"s_lshl_b32 s{S_T0}, s{S_CB}, 7")
    A.e(f"s_add_u32 s{S_WOFF}, s{S_WOFF}, s{S_T0}")
    A.e(f"s_lshl_b32 s42, s{S_W}, 12")
    A.e(f"s_add_u32 s42, s42, {K3_W}")
    A.e("s_waitcnt lgkmcnt(0)")
    srd(A, S_WS, 12, WS_SIZE)
    srd(A, S_WO, 6, 512 * 1024)
    for c in range(4):
        A.e(f"s_add_u32 m0, s41, {K3_O + c*8192}")
        A.e(f"s_add_u32 s{S_T0}, s{S_OOFF}, {c*8192}")
        for i in range(4):
            A.vmem(f"buffer_load_dwordx4 v3, {ws}, s{S_T0} offen offset:{i*1024} lds", f"c{c}")
        for i in range(4):
            A.e(f"s_add_u32 m0, s42, {c*16384 + i*1024}")
            A.e(f"s_add_u32 s{S_T0}, s{S_WOFF}, {c*131072 + i*8192}")
            A.vmem(f"buffer_load_dwordx4 v4, s[{S_WO}:{S_WO+3}], s{S_T0} offen lds", f"c{c}")
    srd(A, S_X, 4, 2048 * 1024)
    srd(A, S_OUT, 8, 2048 * 1024)
    GR, XR = 64, 72
    A.e(f"s_lshl_b32 s{S_T0}, s{S_RT}, 4")
    A.e(f"s_add_u32 s{S_T0}, s{S_T0}, s{S_CT}")
    A.e(f"s_lshl_b32 s{S_T0}, s{S_T0}, 11")
    A.e(f"s_add_u32 s{S_T0}, s{S_T0}, {WS_G}")
    A.vmem(f"buffer_load_dwordx4 {vr(GR,4)}, v3, {ws}, s{S_T0} offen", "g")
    A.vmem(f"buffer_load_dwordx4 {vr(GR+4,4)}, v3, {ws}, s{S_T0} offen offset:1024", "g")
    A.e("v_and_b32 v8, 31, v1")
    A.e("v_lshlrev_b32 v8, 10, v8")
    A.e("v_lshrrev_b32 v9, 5, v1")
    A.e("v_lshl_add_u32 v8, v9, 5, v8")
    A.e(f"s_lshl_b32 s43, s{S_RT}, 15")
    A.e(f"s_lshl_b32 s{S_T0}, s{S_CT}, 6")
    A.e(f"s_add_u32 s43, s43, s{S_T0}")
    A.vmem(f"buffer_load_dwordx4 {vr(XR,4)}, v8, s[{S_X}:{S_X+3}], s43 offen", "g")
    A.vmem(f"buffer_load_dwordx4 {vr(XR+4,4)}, v8, s[{S_X}:{S_X+3}], s43 offen offset:16", "g")
    tr_addr_perm(A, 10, 1, 11, 12, 128)
    A.e("v_bfe_u32 v11, v1, 3, 1")
    A.e(f"s_lshr_b32 s{S_T0}, s{S_W}, 1")
    A.e(f"v_xor_b32 v11, s{S_T0}, v11")
    A.e("v_lshl_add_u32 v10, v11, 6, v10")
    A.e(f"v_add_u32 v10, {K3_W}, v10")
    A.e(f"s_and_b32 s{S_T0}, s{S_W}, 1")
    A.e(f"s_lshl_b32 s{S_T0}, s{S_T0}, 15")
    A.e(f"v_add_u32 v11, s{S_T0}, v3")
    ACC, BF, AF = 16, 32, 48
    for c in range(4):
        A.wait_vm(f"c{c}")
        A.e("s_barrier")
        for half in range(2):
            for k in range(4):
                ks = 8 * c + 4 * half + k
                A.e(f"ds_read_b128 {vr(BF+4*k,4)}, v11 offset:{K3_O + ks*1024}")
                A.e(f"ds_read_b64_tr_b16 {vr(AF+4*k,2)}, v10 offset:{ks*2048}")
                A.e(f"ds_read_b64_tr_b16 {vr(AF+4*k+2,2)}, v10 offset:{ks*2048 + 1024}")
            for k in range(4):
                A.e(f"s_waitcnt lgkmcnt({9-3*k})")
                A.e(mfma(ACC, AF + 4*k, BF + 4*k, None if (c == 0 and half == 0 and k == 0) else ACC))
    A.wait_vm("g")
    GF, XF = 80, 96
    for i in range(8):
        A.e(f"v_lshlrev_b32 v{GF+2*i}, 16, v{GR+i}")
        A.e(f"v_and_b32 v{GF+2*i+1}, 0xffff0000, v{GR+i}")
        A.e(f"v_lshlrev_b32 v{XF+2*i}, 16, v{XR+i}")
        A.e(f"v_and_b32 v{XF+2*i+1}, 0xffff0000, v{XR+i}")
    for i in range(8):
        A.e(f"v_pk_fma_f32 {vr(XF+2*i,2)}, {vr(ACC+2*i,2)}, {vr(GF+2*i,2)}, {vr(XF+2*i,2)}")
    for i in range(8):
        A.e(f"v_cvt_pk_bf16_f32 v{GR+i}, v{XF+2*i}, v{XF+2*i+1}")
    A.e(f"buffer_store_dwordx4 {vr(GR,4)}, v8, s[{S_OUT}:{S_OUT+3}], s43 offen")
    A.e(f"buffer_store_dwordx4 {vr(GR+4,4)}, v8, s[{S_OUT}:{S_OUT+3}], s43 offen offset:16")
    A.label(f"{name}_end")
    A.e("s_endpgm")
    return A.text(), kernel_desc(name, 112), f"; @launch kernel={name} grid=(256,1,1) block=(256,1,1) lds={K3_LDS}"
```

```python
import sys, os
sys.path.insert(0, os.path.dirname(__file__))
from k1 import gen_k1
from k2 import gen_k2
from k3 import gen_k3
from ffn import gen_kgu, gen_kd

HDR = open("recurrent_scan__grouped_kv_mqa__geglu_ffn__prompt.s.ref").read().split("; Override launch")[0]

def build(parts, path):
    out = HDR
    out += "\n".join(p[2] for p in parts) + "\n"
    out += '.amdgcn_target "amdgcn-amd-amdhsa--gfx950"\n'
    seen = set()
    uniq = []
    for p in parts:
        if p[1] not in seen:
            seen.add(p[1]); uniq.append(p)
    out += "".join(p[0] for p in uniq)
    out += "".join(p[1] for p in uniq)
    open(path, "w").write(out)

if __name__ == "__main__":
    import asmlib
    asmlib.LAUNCH_IDX.update({0: 0, 1: 1, 2: 2, 4: 3, 3: 4})
    k2 = gen_k2()
    k2 = (k2[0], k2[1], k2[2].rsplit("lds=", 1)[0] + "lds=98304")
    parts = [gen_k1(), gen_kgu(), k2, gen_kd(), gen_k3()]
    path = sys.argv[1] if len(sys.argv) > 1 else "recurrent_scan__grouped_kv_mqa__geglu_ffn__prompt.s"
    build(parts, path)
```

```python
class Asm:
    def __init__(self):
        self.lines = []
        self.vm = []
        self._lab = 0

    def e(self, s):
        for ln in s.split("\n"):
            ln = ln.strip()
            if ln:
                self.lines.append("    " + ln if not ln.endswith(":") else ln)

    def c(self, s):
        self.lines.append("    ; " + s)

    def label(self, name):
        self.lines.append(name + ":")

    def newlabel(self, base):
        self._lab += 1
        return f"{base}_{self._lab}"

    def vmem(self, s, tag):
        self.e(s)
        self.vm.append(tag)

    def vm_count_after(self, tag):
        idx = max(i for i, t in enumerate(self.vm) if t == tag)
        return len(self.vm) - 1 - idx

    def wait_vm(self, tag, extra=""):
        n = self.vm_count_after(tag)
        assert n <= 63, n
        self.e(f"s_waitcnt vmcnt({n}){extra}")
        idx = len(self.vm) - n
        self.vm = self.vm[idx:]

    def text(self):
        return "\n".join(self.lines) + "\n"


def vr(a, n=1):
    return f"v{a}" if n == 1 else f"v[{a}:{a+n-1}]"

def sr(a, n=1):
    return f"s{a}" if n == 1 else f"s[{a}:{a+n-1}]"

def mfma(d, a, b, c=None):
    cs = "0" if c is None else vr(c, 16)
    return f"v_mfma_f32_32x32x16_bf16 {vr(d,16)}, {vr(a,4)}, {vr(b,4)}, {cs}"

def srd(A, dst, base, size):
    A.e(f"s_mov_b32 s{dst}, s{base}")
    A.e(f"s_mov_b32 s{dst+1}, s{base+1}")
    A.e(f"s_mov_b32 s{dst+2}, {hex(size)}")
    A.e(f"s_mov_b32 s{dst+3}, 0x00020000")

def kernel_begin(A, name):
    A.lines.append(".text")
    A.lines.append(f".globl {name}")
    A.lines.append(".p2align 8")
    A.lines.append(f".type {name},@function")
    A.lines.append(f"{name}:")

def kernel_desc(name, vgpr, sgpr=96):
    acc = (vgpr + 3) // 4 * 4
    return f""".section .rodata,"a"
.p2align 6
.amdhsa_kernel {name}
  .amdhsa_next_free_vgpr {vgpr}
  .amdhsa_next_free_sgpr {sgpr}
  .amdhsa_accum_offset {acc}
  .amdhsa_group_segment_fixed_size 0
  .amdhsa_kernarg_size 96
  .amdhsa_user_sgpr_count 2
  .amdhsa_user_sgpr_kernarg_segment_ptr 1
  .amdhsa_system_sgpr_workgroup_id_x 1
.end_amdhsa_kernel
"""

import struct
def f32hex(x):
    return "0x%08x" % struct.unpack("<I", struct.pack("<f", x))[0]


import os
STAMPS = os.environ.get("STAMPS", "0") == "1"
WS_STAMP = 0xF00000
def stamp(A, idx):
    if not STAMPS: return
    A.e(f"s_memtime s[{64+2*idx}:{65+2*idx}]")
    if idx == 0:
        A.e("s_memrealtime s[80:81]")

def stamp_flush(A, kidx, S_WS, S_W, n, vt=2):
    if not STAMPS: return
    A.e("s_memrealtime s[82:83]")
    A.e("s_waitcnt lgkmcnt(0)")
    A.e("s_lshl_b32 s84, s2, 4")
    A.e(f"s_add_u32 s84, s84, s{S_W}")
    A.e("s_lshl_b32 s84, s84, 6")
    A.e(f"s_add_u32 s84, s84, {WS_STAMP + kidx*0x40000}")
    A.e("s_mov_b64 exec, 1")
    A.e(f"v_mov_b32 v{vt}, 0")
    srcs = [64 + 2 * i for i in range(n)] + [None] * (8 - n) + [80, 82]
    for i, sreg in enumerate(srcs):
        if sreg is None: continue
        A.e(f"v_mov_b32 v{vt+1}, s{sreg}")
        A.e(f"buffer_store_dword v{vt+1}, v{vt}, s[{S_WS}:{S_WS+3}], s84 offen offset:{4*i}")
        A.e("s_nop 1")
```

```python
from asmlib import *
from layout import *

GU_STAGE = 6400
GU_NS = 5
GU_LDS_PER_WAVE = GU_NS * GU_STAGE
DN_NS = 12
DN_LDS_PER_WAVE = DN_NS * 1024

def gen_gateup_wave(A, name, S_WS, S_WG, S_WU, S_GW, S_X, S_J, lds_base, sb=48, store_flags=""):
    ws, wg, wu = (f"s[{r}:{r+3}]" for r in (S_WS, S_WG, S_WU))
    S_T0, S_T1, S_RT, S_F0, S_WOFF, S_XOFF, S_LDS = range(sb, sb + 7)
    ACC = 0
    XF = 96
    AF = 160
    V_L, V_L16, V_D0, V_TR, V_T0, V_T1, V_T2 = 184, 185, 186, 189, 190, 191, 192
    CK0, CK1, CONE = 194, 196, 198
    TMP = 200
    done = f"{name}_gu_done"
    A.e(f"v_and_b32 v{V_L}, 63, v0")
    A.e(f"s_lshl_b32 s{S_RT}, s{S_X}, 1")
    A.e(f"s_and_b32 s{S_T0}, s{S_J}, 1")
    A.e(f"s_add_u32 s{S_RT}, s{S_RT}, s{S_T0}")
    A.e(f"s_lshl_b32 s{S_RT}, s{S_RT}, 1")
    A.e(f"s_and_b32 s{S_T0}, s{S_GW}, 1")
    A.e(f"s_add_u32 s{S_RT}, s{S_RT}, s{S_T0}")
    A.e(f"s_lshl_b32 s{S_RT}, s{S_RT}, 1")
    A.e(f"s_lshr_b32 s{S_F0}, s{S_J}, 1")
    A.e(f"s_lshl_b32 s{S_F0}, s{S_F0}, 1")
    A.e(f"s_lshr_b32 s{S_T0}, s{S_GW}, 1")
    A.e(f"s_add_u32 s{S_F0}, s{S_F0}, s{S_T0}")
    A.e(f"s_mul_i32 s{S_F0}, s{S_F0}, 3")
    A.e(f"s_cmp_ge_u32 s{S_F0}, 86")
    A.e(f"s_cbranch_scc1 {done}")
    A.e(f"s_lshl_b32 s{S_WOFF}, s{S_F0}, 5")
    A.e(f"s_lshl_b32 s{S_XOFF}, s{S_RT}, 15")
    A.e(f"s_mul_i32 s{S_LDS}, s{S_GW}, {GU_LDS_PER_WAVE}")
    A.e(f"s_add_u32 s{S_LDS}, s{S_LDS}, {lds_base}")
    A.e(f"v_lshlrev_b32 v{V_L16}, 4, v{V_L}")
    for n in range(3):
        A.e(f"v_add_u32 v{V_T0}, {64*n}, v{V_L}")
        A.e(f"v_mul_u32_u24 v{V_T1}, 43691, v{V_T0}")
        A.e(f"v_lshrrev_b32 v{V_T1}, 18, v{V_T1}")
        A.e(f"v_mul_u32_u24 v{V_T2}, 6, v{V_T1}")
        A.e(f"v_sub_u32 v{V_T2}, v{V_T0}, v{V_T2}")
        A.e(f"v_mul_u32_u24 v{V_D0+n}, 2752, v{V_T1}")
        A.e(f"v_lshl_add_u32 v{V_D0+n}, v{V_T2}, 4, v{V_D0+n}")

    def w_dma(c):
        st = c % GU_NS
        A.e(f"s_add_u32 s{S_T0}, s{S_WOFF}, {c*32*2752}")
        for mi, m in enumerate((wg, wu)):
            for n in range(3):
                A.e(f"s_add_u32 m0, s{S_LDS}, {st*GU_STAGE + mi*3200 + n*1024}")
                A.e("s_nop 0")
                A.vmem(f"buffer_load_dwordx4 v{V_D0+n}, {m}, s{S_T0} offen lds", f"c{c}")

    def x_load(c):
        base = XF + (c % 4) * 16
        for a in range(2):
            A.e(f"s_add_u32 s{S_T1}, s{S_XOFF}, {a*32768 + c*2048}")
            for k in range(2):
                A.vmem(f"buffer_load_dwordx4 {vr(base + (k*2+a)*4, 4)}, v{V_L16}, {ws}, s{S_T1} offen offset:{k*1024}", f"c{c}")

    for c in range(4):
        w_dma(c)
        x_load(c)
    A.e(f"v_bfe_u32 v{V_T0}, v{V_L}, 4, 1")
    A.e(f"v_mul_u32_u24 v{V_TR}, 3200, v{V_T0}")
    A.e(f"v_lshrrev_b32 v{V_T0}, 5, v{V_L}")
    A.e(f"v_bfe_u32 v{V_T1}, v{V_L}, 2, 2")
    A.e(f"v_lshl_add_u32 v{V_T0}, v{V_T0}, 3, v{V_T1}")
    A.e(f"v_mul_u32_u24 v{V_T0}, 96, v{V_T0}")
    A.e(f"v_add_u32 v{V_TR}, v{V_TR}, v{V_T0}")
    A.e(f"v_and_b32 v{V_T1}, 3, v{V_L}")
    A.e(f"v_lshl_add_u32 v{V_TR}, v{V_T1}, 3, v{V_TR}")
    A.e(f"v_add_u32 v{V_TR}, s{S_LDS}, v{V_TR}")
    k0 = -2.0 * 0.7978845608028654 * LOG2E
    k1 = k0 * 0.044715
    for r, val in ((CK0, k0), (CK1, k1), (CONE, 1.0)):
        A.e(f"v_mov_b32 v{r}, {f32hex(val)}")
        A.e(f"v_mov_b32 v{r+1}, {f32hex(val)}")

    def tr_reads(s):
        c, k = s // 2, s % 2
        off = (c % GU_NS) * GU_STAGE + k * 1536
        ab = AF + (s % 2) * 12
        for b in range(3):
            A.e(f"ds_read_b64_tr_b16 {vr(ab+4*b,2)}, v{V_TR} offset:{off + b*32}")
            A.e(f"ds_read_b64_tr_b16 {vr(ab+4*b+2,2)}, v{V_TR} offset:{off + b*32 + 384}")

    stamp(A, 1)
    A.wait_vm("c0")
    stamp(A, 2)
    tr_reads(0)
    for s in range(32):
        c, k = s // 2, s % 2
        if s + 1 < 32:
            if k == 1:
                A.wait_vm(f"c{c+1}")
            tr_reads(s + 1)
            A.e("s_waitcnt lgkmcnt(6)")
        else:
            A.e("s_waitcnt lgkmcnt(0)")
        if k == 0 and c + 4 < 16:
            w_dma(c + 4)
        ab = AF + (s % 2) * 12
        xb = XF + (c % 4) * 16 + k * 8
        for b in range(3):
            for a in range(2):
                acc = ACC + (a * 3 + b) * 16
                A.e(mfma(acc, ab + 4 * b, xb + 4 * a, None if s == 0 else acc))
        if k == 1 and c + 4 < 16:
            x_load(c + 4)
    A.e("s_nop 7")
    stamp(A, 3)
    for b in range(3):
        skip = f"{name}_gu_skip{b}"
        if b > 0:
            A.e(f"s_add_u32 s{S_T0}, s{S_F0}, {b}")
            A.e(f"s_cmp_ge_u32 s{S_T0}, 86")
            A.e(f"s_cbranch_scc1 {done}")
        for a in range(2):
            acc = ACC + (a * 3 + b) * 16
            T = TMP + a * 16
            for p in range(4):
                g = acc + 2 * p
                A.e(f"v_pk_mul_f32 {vr(T+2*p,2)}, {vr(g,2)}, {vr(g,2)}")
            for p in range(4):
                A.e(f"v_pk_fma_f32 {vr(T+2*p,2)}, {vr(T+2*p,2)}, {vr(CK1,2)}, {vr(CK0,2)}")
            for p in range(4):
                g = acc + 2 * p
                A.e(f"v_pk_mul_f32 {vr(T+2*p,2)}, {vr(T+2*p,2)}, {vr(g,2)}")
            for i in range(8):
                A.e(f"v_exp_f32 v{T+i}, v{T+i}")
            for p in range(4):
                g = acc + 2 * p
                A.e(f"v_pk_mul_f32 {vr(g,2)}, {vr(g,2)}, {vr(g+8,2)}")
            for p in range(4):
                A.e(f"v_pk_add_f32 {vr(T+2*p,2)}, {vr(T+2*p,2)}, {vr(CONE,2)}")
            for i in range(8):
                A.e(f"v_rcp_f32 v{T+i}, v{T+i}")
            A.e(f"s_add_u32 s{S_T0}, s{S_RT}, {a}")
            A.e(f"s_mul_i32 s{S_T0}, s{S_T0}, 86")
            A.e(f"s_add_u32 s{S_T0}, s{S_T0}, s{S_F0}")
            A.e(f"s_lshl_b32 s{S_T0}, s{S_T0}, 10")
            A.e(f"s_add_u32 s{S_T0}, s{S_T0}, {WS_H}")
            for p in range(4):
                g = acc + 2 * p
                A.e(f"v_pk_mul_f32 {vr(g,2)}, {vr(g,2)}, {vr(T+2*p,2)}")
            for p in range(4):
                g = acc + 2 * p
                A.e(f"v_cvt_pk_bf16_f32 v{T+8+p}, v{g}, v{g+1}")
            A.e(f"buffer_store_dwordx4 {vr(T+8,4)}, v{V_L16}, {ws}, s{S_T0} offen offset:{b*1024}{store_flags}")
    A.label(done)


def gen_down_wave(A, name, S_WS, S_WD, S_GW, S_X, S_J, lds_base, lds_stride, sb=48, load_flags=""):
    ws, wd = (f"s[{r}:{r+3}]" for r in (S_WS, S_WD))
    S_T0, S_T1, S_RT, S_CT, S_WOFF, S_HOFF, S_LDS = range(sb, sb + 7)
    ACC = 0
    HF = 16
    AF = 16 + 4 * DN_NS
    V_L, V_L16, V_D, V_TR, V_T0, V_T1 = 184, 185, 186, 189, 190, 191
    T = 96
    A.vm = []
    A.e(f"v_mbcnt_lo_u32_b32 v{V_L}, -1, 0")
    A.e(f"v_mbcnt_hi_u32_b32 v{V_L}, -1, v{V_L}")
    A.e(f"s_lshl_b32 s{S_RT}, s{S_X}, 2")
    A.e(f"s_and_b32 s{S_T0}, s{S_J}, 3")
    A.e(f"s_add_u32 s{S_RT}, s{S_RT}, s{S_T0}")
    A.e(f"s_lshl_b32 s{S_RT}, s{S_RT}, 1")
    A.e(f"s_and_b32 s{S_T0}, s{S_GW}, 1")
    A.e(f"s_add_u32 s{S_RT}, s{S_RT}, s{S_T0}")
    A.e(f"s_lshr_b32 s{S_CT}, s{S_J}, 2")
    A.e(f"s_lshl_b32 s{S_CT}, s{S_CT}, 1")
    A.e(f"s_lshr_b32 s{S_T0}, s{S_GW}, 1")
    A.e(f"s_add_u32 s{S_CT}, s{S_CT}, s{S_T0}")
    A.e(f"s_lshl_b32 s{S_WOFF}, s{S_CT}, 6")
    A.e(f"s_mul_i32 s{S_HOFF}, s{S_RT}, {86*1024}")
    A.e(f"s_add_u32 s{S_HOFF}, s{S_HOFF}, {WS_H}")
    A.e(f"s_mul_i32 s{S_LDS}, s{S_GW}, {lds_stride}")
    A.e(f"s_add_u32 s{S_LDS}, s{S_LDS}, {lds_base}")
    A.e(f"v_lshlrev_b32 v{V_L16}, 4, v{V_L}")
    A.e(f"v_lshrrev_b32 v{V_T0}, 2, v{V_L}")
    A.e(f"v_and_b32 v{V_T1}, 3, v{V_L}")
    A.e(f"v_lshlrev_b32 v{V_D}, 10, v{V_T0}")
    A.e(f"v_lshl_add_u32 v{V_D}, v{V_T1}, 4, v{V_D}")
    tr_addr_perm(A, V_TR, V_L, V_T0, V_T1, 64)
    A.e(f"v_add_u32 v{V_TR}, s{S_LDS}, v{V_TR}")

    def w_dma(s):
        A.e(f"s_add_u32 m0, s{S_LDS}, {(s % DN_NS)*1024}")
        A.e(f"s_add_u32 s{S_T0}, s{S_WOFF}, {s*16384}")
        A.vmem(f"buffer_load_dwordx4 v{V_D}, {wd}, s{S_T0} offen lds", f"s{s}")

    def h_load(s):
        A.e(f"s_add_u32 s{S_T1}, s{S_HOFF}, {s*1024}")
        A.vmem(f"buffer_load_dwordx4 {vr(HF + (s % DN_NS)*4, 4)}, v{V_L16}, {ws}, s{S_T1} offen{load_flags}", f"s{s}")

    def tr_reads(s):
        ab = AF + (s % 2) * 4
        off = (s % DN_NS) * 1024
        A.e(f"ds_read_b64_tr_b16 {vr(ab,2)}, v{V_TR} offset:{off}")
        A.e(f"ds_read_b64_tr_b16 {vr(ab+2,2)}, v{V_TR} offset:{off + 512}")

    D = DN_NS - 1
    for s in range(D):
        w_dma(s)
        h_load(s)
    A.wait_vm("s0")
    tr_reads(0)
    for s in range(86):
        if s + 1 < 86:
            A.wait_vm(f"s{s+1}")
            tr_reads(s + 1)
            A.e("s_waitcnt lgkmcnt(2)")
        else:
            A.e("s_waitcnt lgkmcnt(0)")
        if s + D < 86:
            w_dma(s + D)
            h_load(s + D)
        A.e(mfma(ACC, AF + (s % 2) * 4, HF + (s % DN_NS) * 4, None if s == 0 else ACC))
    A.e(f"s_lshl_b32 s{S_T0}, s{S_RT}, 4")
    A.e(f"s_add_u32 s{S_T0}, s{S_T0}, s{S_CT}")
    A.e(f"s_lshl_b32 s{S_T0}, s{S_T0}, 11")
    A.e(f"s_add_u32 s{S_T0}, s{S_T0}, {WS_G}")
    A.e(f"s_mov_b32 s{S_T1}, {f32hex(-LOG2E)}")
    A.e("s_nop 7")
    for i in range(16):
        A.e(f"v_mul_f32 v{T+i}, s{S_T1}, v{ACC+i}")
    for i in range(16):
        A.e(f"v_exp_f32 v{T+i}, v{T+i}")
    for i in range(16):
        A.e(f"v_add_f32 v{T+i}, 1.0, v{T+i}")
    for i in range(16):
        A.e(f"v_rcp_f32 v{T+i}, v{T+i}")
    for i in range(16):
        A.e(f"v_mul_f32 v{ACC+i}, v{ACC+i}, v{T+i}")
    for i in range(8):
        A.e(f"v_cvt_pk_bf16_f32 v{T+i}, v{ACC+2*i}, v{ACC+2*i+1}")
    A.e(f"buffer_store_dwordx4 {vr(T,4)}, v{V_L16}, {ws}, s{S_T0} offen")
    A.e(f"buffer_store_dwordx4 {vr(T+4,4)}, v{V_L16}, {ws}, s{S_T0} offen offset:1024")


def tr_addr_perm(A, V_TR, V_L, V_T0, V_T1, rowbytes):
    sh = rowbytes.bit_length() - 1
    A.e(f"v_lshrrev_b32 v{V_T0}, 5, v{V_L}")
    A.e(f"v_bfe_u32 v{V_T1}, v{V_L}, 2, 2")
    A.e(f"v_lshl_add_u32 v{V_T0}, v{V_T0}, 2, v{V_T1}")
    A.e(f"v_lshlrev_b32 v{V_TR}, {sh}, v{V_T0}")
    A.e(f"v_and_b32 v{V_T0}, 1, v{V_L}")
    A.e(f"v_lshl_add_u32 v{V_TR}, v{V_T0}, 5, v{V_TR}")
    A.e(f"v_bfe_u32 v{V_T0}, v{V_L}, 4, 1")
    A.e(f"v_lshl_add_u32 v{V_TR}, v{V_T0}, 4, v{V_TR}")
    A.e(f"v_bfe_u32 v{V_T0}, v{V_L}, 1, 1")
    A.e(f"v_lshl_add_u32 v{V_TR}, v{V_T0}, 3, v{V_TR}")


def _prolog(A, name):
    kernel_begin(A, name)
    A.e("s_cmp_ge_u32 s2, 256")
    A.e(f"s_cbranch_scc1 {name}_end")
    stamp(A, 0)
    A.e("s_load_dwordx4 s[4:7], s[0:1], 48")
    A.e("s_load_dwordx2 s[8:9], s[0:1], 64")
    A.e("s_load_dwordx2 s[12:13], s[0:1], 88")
    A.e("v_lshrrev_b32 v2, 6, v0")
    A.e("s_and_b32 s35, s2, 7")
    A.e("v_readfirstlane_b32 s32, v2")
    A.e("s_lshr_b32 s36, s2, 3")
    A.e("s_waitcnt lgkmcnt(0)")
    srd(A, 16, 4, 512 * 2752)
    srd(A, 20, 6, 512 * 2752)
    srd(A, 24, 8, 1376 * 1024)
    srd(A, 28, 12, WS_SIZE)

def gen_kgu(name="kgu_kernel"):
    A = Asm()
    _prolog(A, name)
    gen_gateup_wave(A, name, 28, 16, 20, 32, 35, 36, 0)
    stamp(A, 4)
    stamp_flush(A, 1, 28, 32, 5, vt=240)
    A.label(f"{name}_end")
    A.e("s_endpgm")
    return A.text(), kernel_desc(name, 256), f"; @launch kernel={name} grid=(256,1,1) block=(256,1,1) lds={4*GU_LDS_PER_WAVE}"

def gen_kd(name="kd_kernel"):
    A = Asm()
    _prolog(A, name)
    gen_down_wave(A, name, 28, 24, 32, 35, 36, 0, DN_LDS_PER_WAVE)
    stamp(A, 1)
    stamp_flush(A, 4, 28, 32, 2, vt=240)
    A.label(f"{name}_end")
    A.e("s_endpgm")
    return A.text(), kernel_desc(name, 256), f"; @launch kernel={name} grid=(256,1,1) block=(256,1,1) lds=98304"
```

```python
from asmlib import *
from layout import *

K1_XNL = 0
K1_KV = 33792
K1_RING = 50176
K1_SLOTS = 6
K1_LDS = K1_RING + K1_SLOTS * 16384

def dpp_reduce16(A, v, tmp=None):
    for r in (8, 4, 2, 1):
        A.e("s_nop 1")
        A.e(f"v_add_f32_dpp v{v}, v{v}, v{v} row_ror:{r} row_mask:0xf bank_mask:0xf")

def bf16_round(A, v):
    A.e(f"v_cvt_pk_bf16_f32 v{v}, v{v}, v{v}")
    A.e(f"v_lshlrev_b32 v{v}, 16, v{v}")

def gen_k1(name="k1_kernel"):
    A = Asm()
    kernel_begin(A, name)
    S_X, S_WQ, S_KVW, S_WS = 16, 20, 24, 28
    S_W, S_RT, S_G, S_T0, S_T1, S_QOFF, S_LDSW = 32, 33, 34, 35, 36, 37, 38
    A.e("s_cmp_ge_u32 s2, 256")
    A.e(f"s_cbranch_scc1 {name}_end")
    stamp(A, 0)
    A.e("s_load_dwordx8 s[4:11], s[0:1], 0")
    A.e("s_load_dwordx2 s[12:13], s[0:1], 88")
    A.e("v_lshrrev_b32 v2, 6, v0")
    A.e("v_and_b32 v1, 63, v0")
    A.e(f"v_readfirstlane_b32 s{S_W}, v2")
    A.e(f"s_and_b32 s{S_T0}, s2, 7")
    A.e(f"s_lshr_b32 s{S_T1}, s2, 3")
    A.e(f"s_lshr_b32 s{S_G}, s{S_T1}, 3")
    A.e(f"s_and_b32 s{S_T1}, s{S_T1}, 7")
    A.e(f"s_lshl_b32 s{S_RT}, s{S_T0}, 3")
    A.e(f"s_add_u32 s{S_RT}, s{S_RT}, s{S_T1}")
    A.e("v_lshrrev_b32 v3, 4, v0")
    A.e("v_and_b32 v4, 15, v0")
    A.e("v_lshlrev_b32 v5, 10, v3")
    A.e("v_lshl_add_u32 v5, v4, 4, v5")
    A.e("v_lshrrev_b32 v7, 4, v1")
    A.e("v_lshrrev_b32 v8, 2, v4")
    A.e("v_xor_b32 v8, v8, v7")
    A.e("v_and_b32 v9, 3, v4")
    A.e("v_lshl_add_u32 v8, v8, 2, v9")
    A.e("v_lshlrev_b32 v6, 10, v7")
    A.e("v_lshl_add_u32 v6, v8, 4, v6")
    A.e("v_lshlrev_b32 v10, 4, v1")
    A.e(f"s_lshl_b32 s{S_T0}, s{S_RT}, 15")
    A.e(f"s_lshl_b32 s{S_QOFF}, s{S_G}, 8")
    A.e(f"s_lshl_b32 s{S_T1}, s{S_W}, 13")
    A.e(f"s_add_u32 s{S_QOFF}, s{S_QOFF}, s{S_T1}")
    A.e(f"s_lshl_b32 s{S_LDSW}, s{S_W}, 11")
    A.e(f"s_add_u32 s{S_LDSW}, s{S_LDSW}, {K1_RING}")
    A.e("s_waitcnt lgkmcnt(0)")
    srd(A, S_X, 4, 2048 * 1024)
    for q in range(4):
        A.vmem(f"buffer_load_dwordx4 v[{16+4*q}:{19+4*q}], v5, s[{S_X}:{S_X+3}], s{S_T0} offen offset:{q*256}", "x")
    srd(A, S_WQ, 6, 512 * 1024)
    srd(A, S_WS, 12, WS_SIZE)
    A.e(f"s_cmp_eq_u32 s{S_G}, 0")
    A.e(f"s_cselect_b32 s{S_KVW}, s8, s10")
    A.e(f"s_cselect_b32 s{S_KVW+1}, s9, s11")
    A.e(f"s_mov_b32 s{S_KVW+2}, {512*32}")
    A.e(f"s_mov_b32 s{S_KVW+3}, 0x00020000")

    def q_dma(A, c):
        slot = c % K1_SLOTS
        for e in range(2):
            A.e(f"s_add_u32 m0, s{S_LDSW}, {slot*16384 + e*1024}")
            A.e(f"s_add_u32 s{S_T1}, s{S_QOFF}, {c*65536 + e*4096}")
            A.vmem(f"buffer_load_dwordx4 v6, s[{S_WQ}:{S_WQ+3}], s{S_T1} offen lds", f"q{c}")

    def ln(A):
        stamp(A, 1)
        A.wait_vm("x")
        stamp(A, 2)
        for d in range(16):
            A.e(f"v_lshlrev_b32 v{32+2*d}, 16, v{16+d}")
            A.e(f"v_and_b32 v{33+2*d}, 0xffff0000, v{16+d}")
        A.e("v_pk_add_f32 v[12:13], v[32:33], v[34:35]")
        A.e("v_pk_add_f32 v[14:15], v[36:37], v[38:39]")
        for d in range(4, 16, 2):
            A.e(f"v_pk_add_f32 v[12:13], v[12:13], v[{32+2*d}:{33+2*d}]")
            A.e(f"v_pk_add_f32 v[14:15], v[14:15], v[{34+2*d}:{35+2*d}]")
        A.e("v_pk_add_f32 v[12:13], v[12:13], v[14:15]")
        A.e("v_add_f32 v12, v12, v13")
        dpp_reduce16(A, 12)
        A.e(f"v_mul_f32 v12, {f32hex(1.0/512)}, v12")
        A.e("v_mov_b32 v14, v12")
        bf16_round(A, 14)
        A.e("v_sub_f32 v11, v12, v14")
        for d in range(16):
            A.e(f"v_pk_add_f32 v[{32+2*d}:{33+2*d}], v[{32+2*d}:{33+2*d}], v[14:15] op_sel_hi:[1,0] neg_lo:[0,1] neg_hi:[0,1]")
        A.e("v_pk_mul_f32 v[12:13], v[32:33], v[32:33]")
        A.e("v_pk_mul_f32 v[14:15], v[34:35], v[34:35]")
        for d in range(2, 16, 2):
            A.e(f"v_pk_fma_f32 v[12:13], v[{32+2*d}:{33+2*d}], v[{32+2*d}:{33+2*d}], v[12:13]")
            A.e(f"v_pk_fma_f32 v[14:15], v[{34+2*d}:{35+2*d}], v[{34+2*d}:{35+2*d}], v[14:15]")
        A.e("v_pk_add_f32 v[12:13], v[12:13], v[14:15]")
        A.e("v_add_f32 v12, v12, v13")
        dpp_reduce16(A, 12)
        A.e(f"v_mul_f32 v12, {f32hex(1.0/512)}, v12")
        A.e("v_fma_f32 v12, -v11, v11, v12")
        A.e("v_max_f32 v12, 0, v12")
        bf16_round(A, 12)
        A.e(f"v_add_f32 v12, {f32hex(1e-5)}, v12")
        bf16_round(A, 12)
        A.e("v_sqrt_f32 v12, v12")
        A.e("s_nop 0")
        bf16_round(A, 12)
        A.e("v_rcp_f32 v12, v12")
        A.e("v_mul_u32_u24 v11, 528, v4")
        A.e("v_lshl_add_u32 v11, v3, 4, v11")
        for d in range(16):
            A.e(f"v_pk_mul_f32 v[{32+2*d}:{33+2*d}], v[{32+2*d}:{33+2*d}], v[12:13] op_sel_hi:[1,0]")
        for d in range(16):
            A.e(f"v_cvt_pk_bf16_f32 v{16+d}, v{32+2*d}, v{33+2*d}")
        for q in range(4):
            A.e(f"ds_write_b128 v11, v[{16+4*q}:{19+4*q}] offset:{K1_XNL + q*16*528}")
        A.e("v_lshrrev_b32 v14, 5, v1")
        A.e("v_and_b32 v15, 31, v1")
        A.e("v_mul_u32_u24 v13, 528, v14")
        A.e("v_lshl_add_u32 v13, v15, 4, v13")
        A.e("s_waitcnt lgkmcnt(0)")

    def chunk_head(A, c):
        A.wait_vm(f"q{c}")
        A.e("s_barrier")
        if c in (1, 2):
            q_dma(A, c + 5)

    ACC, BF, AF = 64, 80, 96
    lab_kv, lab_other = f"{name}_kv", f"{name}_other"
    A.e(f"s_cmp_eq_u32 s{S_W}, 4")
    A.e(f"s_cselect_b32 s{S_T1}, 1, 0")
    A.e(f"s_cmp_lt_u32 s{S_G}, 2")
    A.e(f"s_cselect_b32 s{S_T1}, s{S_T1}, 0")
    A.e(f"s_cmp_eq_u32 s{S_T1}, 1")
    A.e(f"s_cbranch_scc1 {lab_kv}")
    vm0 = list(A.vm)
    for c in range(K1_SLOTS):
        q_dma(A, c)
    ln(A)
    A.e(f"s_cmp_ge_u32 s{S_W}, 4")
    A.e(f"s_cbranch_scc1 {lab_other}")
    vm1 = list(A.vm)

    stamp(A, 3)
    A.e("v_lshrrev_b32 v7, 2, v4")
    A.e("v_and_b32 v8, 3, v4")
    A.e("v_lshl_add_u32 v9, v14, 3, v7")
    A.e("v_lshlrev_b32 v12, 8, v9")
    A.e(f"v_xor_b32 v7, s{S_W}, v7")
    A.e("v_lshl_add_u32 v12, v7, 6, v12")
    A.e("v_bfe_u32 v7, v1, 4, 1")
    A.e("v_lshl_add_u32 v12, v7, 5, v12")
    A.e("v_lshl_add_u32 v12, v8, 3, v12")
    A.e(f"v_add_u32 v12, {K1_RING}, v12")
    A.e("v_add_u32 v11, 49152, v12")
    for c in range(8):
        chunk_head(A, c)
        if c == 0: stamp(A, 4)
        if c == 7: stamp(A, 5)
        slot = c % K1_SLOTS
        areg, aoff = (12, slot * 16384) if slot < 3 else (11, (slot - 3) * 16384)
        for k in range(4):
            ks = 4 * c + k
            A.e(f"ds_read_b128 v[{BF+4*k}:{BF+4*k+3}], v13 offset:{K1_XNL + ks*1056}")
            A.e(f"ds_read_b64_tr_b16 v[{AF+4*k}:{AF+4*k+1}], v{areg} offset:{aoff + k*4096}")
            A.e(f"ds_read_b64_tr_b16 v[{AF+4*k+2}:{AF+4*k+3}], v{areg} offset:{aoff + k*4096 + 1024}")
        for k in range(4):
            A.e(f"s_waitcnt lgkmcnt({9-3*k})")
            A.e(mfma(ACC, AF + 4*k, BF + 4*k, None if (c == 0 and k == 0) else ACC))
    A.e(f"s_lshl_b32 s{S_T0}, s{S_RT}, 5")
    A.e(f"s_lshl_b32 s{S_T1}, s{S_G}, 3")
    A.e(f"s_add_u32 s{S_T0}, s{S_T0}, s{S_T1}")
    A.e(f"s_lshl_b32 s{S_T1}, s{S_W}, 1")
    A.e(f"s_add_u32 s{S_T0}, s{S_T0}, s{S_T1}")
    A.e(f"s_lshl_b32 s{S_T0}, s{S_T0}, 10")
    A.e(f"s_add_u32 s{S_T0}, s{S_T0}, {WS_Q}")
    A.e(f"s_mov_b32 s{S_T1}, {f32hex(QSCALE)}")
    A.e("s_nop 7")
    for i in range(16):
        A.e(f"v_mul_f32 v{ACC+i}, s{S_T1}, v{ACC+i}")
    for i in range(8):
        A.e(f"v_cvt_pk_bf16_f32 v{BF+i}, v{ACC+2*i}, v{ACC+2*i+1}")
    A.e(f"buffer_store_dwordx4 v[{BF}:{BF+3}], v10, s[{S_WS}:{S_WS+3}], s{S_T0} offen")
    A.e(f"buffer_store_dwordx4 v[{BF+4}:{BF+7}], v10, s[{S_WS}:{S_WS+3}], s{S_T0} offen offset:1024")
    stamp(A, 6)
    stamp_flush(A, 0, S_WS, S_W, 7)
    A.e("s_endpgm")

    A.label(lab_other)
    A.vm = list(vm1)
    chunk_head(A, 0)
    lab_skip = f"{name}_noxn"
    A.e(f"s_lshl_b32 s{S_T0}, s{S_G}, 3")
    A.e(f"s_and_b32 s{S_T1}, s{S_W}, 1")
    A.e(f"s_lshl_b32 s{S_T1}, s{S_T1}, 2")
    A.e(f"s_add_u32 s{S_T0}, s{S_T0}, s{S_T1}")
    A.e(f"s_mul_i32 s{S_T1}, s{S_T0}, 1056")
    A.e(f"v_add_u32 v12, s{S_T1}, v13")
    A.e(f"s_lshl_b32 s39, s{S_RT}, 5")
    A.e(f"s_add_u32 s39, s39, s{S_T0}")
    A.e(f"s_lshl_b32 s39, s39, 10")
    for k in range(4):
        A.e(f"ds_read_b128 v[{BF+4*k}:{BF+4*k+3}], v12 offset:{K1_XNL + k*1056}")
    for c in range(1, 8):
        chunk_head(A, c)
        if c == 3:
            A.e(f"s_cmp_lt_u32 s{S_W}, 6")
            A.e(f"s_cbranch_scc1 {lab_skip}")
            A.e("s_waitcnt lgkmcnt(0)")
            for k in range(4):
                A.e(f"buffer_store_dwordx4 v[{BF+4*k}:{BF+4*k+3}], v10, s[{S_WS}:{S_WS+3}], s39 offen offset:{k*1024}")
            A.label(lab_skip)
    A.e("s_endpgm")

    A.label(lab_kv)
    A.vm = list(vm0)
    for n in range(16):
        if n % 4 == 0:
            A.e(f"s_mov_b32 m0, {K1_KV + n*1024}")
            A.e(f"s_mov_b32 s{S_T1}, {n*1024}")
        A.vmem(f"buffer_load_dwordx4 v10, s[{S_KVW}:{S_KVW+3}], s{S_T1} offen offset:{(n%4)*1024} lds", "kv")
    for c in range(K1_SLOTS):
        q_dma(A, c)
    ln(A)
    A.e("v_lshrrev_b32 v7, 2, v4")
    A.e("v_and_b32 v8, 3, v4")
    A.e("v_lshl_add_u32 v9, v14, 3, v7")
    A.e("v_lshlrev_b32 v12, 5, v9")
    A.e("v_lshl_add_u32 v12, v8, 3, v12")
    lab_v = f"{name}_vpath"
    A.e(f"s_cmp_eq_u32 s{S_G}, 1")
    A.e(f"s_cbranch_scc1 {lab_v}")
    vm2 = list(A.vm)
    for mode in ("k", "v"):
        if mode == "v":
            A.label(lab_v)
            A.vm = list(vm2)
        for c in range(8):
            chunk_head(A, c)
            for k in range(4):
                ks = 4 * c + k
                A.e(f"ds_read_b128 v[{BF+4*k}:{BF+4*k+3}], v13 offset:{K1_XNL + ks*1056}")
                A.e(f"ds_read_b64_tr_b16 v[{AF+4*k}:{AF+4*k+1}], v12 offset:{K1_KV + ks*512}")
                A.e(f"ds_read_b64_tr_b16 v[{AF+4*k+2}:{AF+4*k+3}], v12 offset:{K1_KV + ks*512 + 128}")
            for k in range(4):
                A.e(f"s_waitcnt lgkmcnt({9-3*k})")
                cc = None if (c == 0 and k == 0) else ACC
                if mode == "k":
                    A.e(mfma(ACC, AF + 4*k, BF + 4*k, cc))
                else:
                    A.e(mfma(ACC, BF + 4*k, AF + 4*k, cc))
        A.e(f"s_lshl_b32 s{S_T0}, s{S_RT}, 10")
        A.e(f"s_add_u32 s{S_T0}, s{S_T0}, {WS_K if mode == 'k' else WS_V}")
        A.e("v_lshl_add_u32 v9, v14, 4, v4")
        A.e("v_lshlrev_b32 v9, 4, v9")
        A.e("s_nop 15")
        if mode == "k":
            for i in range(4):
                A.e(f"v_cvt_pk_bf16_f32 v{BF+i}, v{ACC+2*i}, v{ACC+2*i+1}")
            A.e(f"buffer_store_dwordx4 v[{BF}:{BF+3}], v10, s[{S_WS}:{S_WS+3}], s{S_T0} offen")
        else:
            for i in range(8):
                A.e(f"v_cvt_pk_bf16_f32 v{BF+i}, v{ACC+2*i}, v{ACC+2*i+1}")
            A.e("s_mov_b32 exec_lo, 0x0000ffff")
            A.e("s_mov_b32 exec_hi, 0x0000ffff")
            A.e(f"buffer_store_dwordx4 v[{BF}:{BF+3}], v9, s[{S_WS}:{S_WS+3}], s{S_T0} offen")
            A.e(f"buffer_store_dwordx4 v[{BF+4}:{BF+7}], v9, s[{S_WS}:{S_WS+3}], s{S_T0} offen offset:512")
        A.e("s_endpgm")
    A.label(f"{name}_end")
    A.e("s_endpgm")
    return A.text(), kernel_desc(name, 112), f"; @launch kernel={name} grid=(256,1,1) block=(512,1,1) lds={K1_LDS}"
```

```python
from asmlib import *
from layout import *

K2_ACC = 0
K2_SLOT = 2304
K2_ACC_SZ = 8 * 4 * K2_SLOT

def flush_partial(A):
    A.e(f"ds_write_b128 v{V_ACC}, {vr(OR,4)}")
    A.e(f"ds_write_b128 v{V_ACC}, {vr(OR+4,4)} offset:1024")
    A.e(f"ds_write_b32 v{V_ACCL}, v{OR+8} offset:2048")

KR, VR, S0, S1, OR, QR, QN = 0, 64, 192, 208, 224, 240, 244
V_LANE16, V_ACC, V_VOFF, V_T0, V_T1, V_T2, V_ACCL = 248, 249, 250, 251, 252, 253, 254
NT = 16

def att_stream(A, t, first_pass, pass_start_adds, last_tile_in_kernel=False, waits=None, qswitch=None):
    S = S0 if t % 2 == 0 else S1
    Sp = S1 if t % 2 == 0 else S0
    e = lambda i: f"v_exp_f32 v{S+i}, v{S+i}"
    c = lambda j: f"v_cvt_pk_bf16_f32 v{S + (j if j < 4 else 4 + j)}, v{S+2*j}, v{S+2*j+1}"
    pos = [2, 6, 11]
    if t == 0 and pass_start_adds:
        pos = [2, 6, 13]
    cv_after = {3: 0, 5: 1, 7: 2, 8: 3, 11: 4, 13: 5, 15: 6}
    for i in range(16):
        if i == pos[0] and not (t == 0 and first_pass):
            A.e(mfma(OR, VR + 8 * ((t - 1) % NT) + 4, Sp + 8, OR))
        if i == pos[1]:
            if waits: waits("k", (t + 1) % NT)
            A.e(mfma(Sp, KR + 4 * ((t + 1) % NT), QR))
            if t == NT - 2 and qswitch: qswitch()
        if i == pos[2]:
            if t == 0 and pass_start_adds:
                flush_partial(A)
                A.e(f"v_add_u32 v{V_ACC}, {4*K2_SLOT}, v{V_ACC}")
                A.e(f"v_add_u32 v{V_ACCL}, {4*K2_SLOT}, v{V_ACCL}")
            if waits: waits("v", t)
            A.e(mfma(OR, VR + 8 * t, S, None if t == 0 else OR))
        A.e(e(i))
        if i in cv_after:
            A.e(c(cv_after[i]))
    A.e(c(7))

def gen_attention_body(A, name, S_WS, S_W, S_RT, S_HG, nwaves_total):
    S_T0, S_T1, S_Q, S_CNT, S_KO, S_VO = 40, 41, 42, 43, 44, 45
    ws = f"s[{S_WS}:{S_WS+3}]"
    A.e(f"v_and_b32 v{V_T0}, 63, v0")
    A.e(f"v_lshlrev_b32 v{V_LANE16}, 4, v{V_T0}")
    A.e(f"s_mul_i32 s{S_T0}, s{S_W}, {K2_SLOT}")
    A.e(f"v_add_u32 v{V_ACC}, s{S_T0}, v{V_LANE16}")
    A.e(f"v_lshl_add_u32 v{V_ACCL}, v{V_T0}, 2, s{S_T0}")
    A.e(f"v_lshrrev_b32 v{V_T1}, 5, v{V_T0}")
    A.e(f"v_and_b32 v{V_T2}, 15, v{V_T0}")
    A.e(f"v_lshl_add_u32 v{V_VOFF}, v{V_T1}, 4, v{V_T2}")
    A.e(f"v_lshlrev_b32 v{V_VOFF}, 4, v{V_VOFF}")
    A.e(f"s_lshl_b32 s{S_Q}, s{S_RT}, 5")
    A.e(f"s_lshl_b32 s{S_T0}, s{S_HG}, 3")
    A.e(f"s_add_u32 s{S_Q}, s{S_Q}, s{S_T0}")
    A.e(f"s_lshl_b32 s{S_Q}, s{S_Q}, 10")
    A.e(f"s_add_u32 s{S_Q}, s{S_Q}, {WS_Q}")
    A.e(f"s_lshl_b32 s{S_KO}, s{S_W}, 14")
    A.e(f"s_add_u32 s{S_VO}, s{S_KO}, {WS_V}")
    A.e(f"s_add_u32 s{S_KO}, s{S_KO}, {WS_K}")
    A.vmem(f"buffer_load_dwordx4 {vr(QR,4)}, v{V_LANE16}, {ws}, s{S_Q} offen", "q")
    for grp in range(4):
        A.e(f"s_add_u32 s{S_T0}, s{S_KO}, {grp*4096}")
        for i in range(4):
            t = 4 * grp + i
            A.vmem(f"buffer_load_dwordx4 {vr(KR+4*t,4)}, v{V_LANE16}, {ws}, s{S_T0} offen offset:{i*1024}", f"k{t}")
        A.e(f"s_add_u32 s{S_T0}, s{S_VO}, {grp*4096}")
        A.e("s_mov_b32 exec_lo, 0x0000ffff")
        A.e("s_mov_b32 exec_hi, 0x0000ffff")
        for i in range(8):
            t = 4 * grp + i // 2
            A.vmem(f"buffer_load_dwordx4 {vr(VR+16*2*grp+4*i,4)}, v{V_VOFF}, {ws}, s{S_T0} offen offset:{i*512}", f"v{t}")
        A.e("s_mov_b64 exec, -1")
    A.vmem(f"buffer_load_dwordx4 {vr(QN,4)}, v{V_LANE16}, {ws}, s{S_Q} offen offset:1024", "qn")
    A.e("s_mov_b32 exec_lo, 0xffff0000")
    A.e("s_mov_b32 exec_hi, 0xffff0000")
    A.e(f"s_mov_b32 s{S_T0}, 0x3f803f80")
    for r in range(128):
        A.e(f"v_mov_b32 v{VR+r}, s{S_T0}")
    A.e("s_mov_b64 exec, -1")
    stamp(A, 1)
    A.wait_vm("k0")
    stamp(A, 2)
    A.e(mfma(S0, KR, QR))
    A.e(f"s_add_u32 s{S_Q}, s{S_Q}, 2048")
    A.e(f"s_mov_b32 s{S_CNT}, 7")
    A.e("s_nop 10")

    def waits(kind, t):
        tag = f"{kind}{t}"
        if tag in A.vm:
            A.wait_vm(tag)

    def qswitch():
        A.e("s_waitcnt vmcnt(0)")
        for i in range(4):
            A.e(f"v_mov_b32 v{QR+i}, v{QN+i}")
        A.e(f"buffer_load_dwordx4 {vr(QN,4)}, v{V_LANE16}, {ws}, s{S_Q} offen")
        A.e(f"s_add_u32 s{S_Q}, s{S_Q}, 1024")

    for t in range(NT):
        att_stream(A, t, True, False, waits=waits, qswitch=qswitch)
    A.vm = []
    stamp(A, 3)
    loop = f"{name}_att_loop"
    A.label(loop)
    for t in range(NT):
        att_stream(A, t, False, True, qswitch=qswitch)
    A.e(f"s_sub_u32 s{S_CNT}, s{S_CNT}, 1")
    A.e(f"s_cmp_lg_u32 s{S_CNT}, 0")
    A.e(f"s_cbranch_scc1 {loop}")
    stamp(A, 4)
    A.e("s_nop 1")
    A.e(mfma(OR, VR + 8 * (NT - 1) + 4, S1 + 8, OR))
    A.e("s_nop 15")
    flush_partial(A)
    A.e("s_waitcnt vmcnt(0) lgkmcnt(0)")
    A.e("s_barrier")
    stamp(A, 5)
    A.e(f"s_mul_i32 s{S_T0}, s{S_W}, {8*K2_SLOT}")
    A.e(f"v_add_u32 v{V_ACC}, s{S_T0}, v{V_LANE16}")
    A.e(f"v_lshrrev_b32 v{V_ACCL}, 2, v{V_LANE16}")
    A.e(f"v_add_u32 v{V_ACCL}, s{S_T0}, v{V_ACCL}")
    A.e(f"s_lshl_b32 s{S_Q}, s{S_RT}, 5")
    A.e(f"s_lshl_b32 s{S_T0}, s{S_HG}, 3")
    A.e(f"s_add_u32 s{S_Q}, s{S_Q}, s{S_T0}")
    A.e(f"s_lshl_b32 s{S_T0}, s{S_W}, 1")
    A.e(f"s_add_u32 s{S_Q}, s{S_Q}, s{S_T0}")
    A.e(f"s_lshl_b32 s{S_Q}, s{S_Q}, 10")
    PT = 72
    for j in range(2):
        for p in range(4):
            base = PT + (j * 4 + p) * 12
            off = K2_ACC + (j * 4 + p) * K2_SLOT
            A.e(f"ds_read_b128 {vr(base,4)}, v{V_ACC} offset:{off}")
            A.e(f"ds_read_b128 {vr(base+4,4)}, v{V_ACC} offset:{off+1024}")
            A.e(f"ds_read_b32 v{base+8}, v{V_ACCL} offset:{off+2048}")
        A.e("s_waitcnt lgkmcnt(0)")
        b0 = PT + j * 48
        for r in range(9):
            A.e(f"v_add_f32 v{b0+r}, v{b0+r}, v{b0+12+r}")
            A.e(f"v_add_f32 v{b0+24+r}, v{b0+24+r}, v{b0+36+r}")
        for r in range(9):
            A.e(f"v_add_f32 v{16*j+r}, v{b0+r}, v{b0+24+r}")
    A.e(f"s_mov_b32 s{S_CNT}, 0")
    fin = f"{name}_fin"
    slow = f"{name}_slow"
    done1 = f"{name}_fin_store"
    A.label(fin)
    A.e(f"v_mov_b32 v{V_T0}, {f32hex(2.0**-60)}")
    A.e(f"v_mov_b32 v{V_T1}, {f32hex(2.0**60)}")
    A.e(f"v_cmp_gt_f32 vcc, v8, v{V_T0}")
    A.e(f"v_cmp_lt_f32 s[46:47], v8, v{V_T1}")
    A.e("s_and_b64 vcc, vcc, s[46:47]")
    A.e("s_cmp_eq_u64 vcc, -1")
    A.e(f"s_cbranch_scc0 {slow}")
    A.label(done1)
    A.e("v_rcp_f32 v8, v8")
    A.e("s_nop 0")
    for r in range(8):
        A.e(f"v_mul_f32 v{r}, v{r}, v8")
    for i in range(4):
        A.e(f"v_cvt_pk_bf16_f32 v{12+i}, v{2*i}, v{2*i+1}")
    A.e(f"s_add_u32 s{S_T0}, s{S_Q}, {WS_O}")
    A.e(f"buffer_store_dwordx4 v[12:15], v{V_LANE16}, {ws}, s{S_T0} offen")
    A.e(f"s_cmp_eq_u32 s{S_CNT}, 1")
    A.e(f"s_cbranch_scc1 {name}_att_end")
    A.e(f"s_mov_b32 s{S_CNT}, 1")
    A.e(f"s_add_u32 s{S_Q}, s{S_Q}, 1024")
    for r in range(9):
        A.e(f"v_mov_b32 v{r}, v{16+r}")
    A.e(f"s_branch {fin}")
    A.label(f"{name}_att_end")
    stamp(A, 6)
    stamp_flush(A, 2, S_WS, S_W, 7)
    A.e("s_endpgm")

    A.label(slow)
    SQ, SK, SS, SC, SO, SM = 32, 36, 192, 208, 224, 40
    A.e(f"s_add_u32 s{S_T0}, s{S_Q}, {WS_Q}")
    A.e(f"buffer_load_dwordx4 {vr(SQ,4)}, v{V_LANE16}, {ws}, s{S_T0} offen")
    A.e(f"v_mov_b32 v{SM}, 0xff800000")
    A.e(f"s_mov_b32 s{S_T0}, {WS_K}")
    l1 = f"{name}_slow1"
    A.label(l1)
    A.e(f"buffer_load_dwordx4 {vr(SK,4)}, v{V_LANE16}, {ws}, s{S_T0} offen")
    A.e("s_waitcnt vmcnt(0)")
    A.e(mfma(SS, SK, SQ))
    A.e("s_nop 15")
    for i in range(8):
        A.e(f"v_max3_f32 v{SM}, v{SS+2*i}, v{SS+2*i+1}, v{SM}")
    A.e(f"s_add_u32 s{S_T0}, s{S_T0}, 1024")
    A.e(f"s_cmp_lt_u32 s{S_T0}, {WS_K + 65536}")
    A.e(f"s_cbranch_scc1 {l1}")
    A.e(f"v_mov_b32 v{SM+1}, v{SM}")
    A.e("s_nop 1")
    A.e(f"v_permlane32_swap_b32 v{SM}, v{SM+1}")
    A.e("s_nop 1")
    A.e(f"v_max_f32 v{SM}, v{SM}, v{SM+1}")
    for i in range(16):
        A.e(f"v_sub_f32 v{SC+i}, 0, v{SM}")
        A.e(f"v_mov_b32 v{SO+i}, 0")
    A.e(f"s_mov_b32 s{S_T0}, 0")
    l2 = f"{name}_slow2"
    A.label(l2)
    A.e(f"s_add_u32 s{S_T1}, s{S_T0}, {WS_K}")
    A.e(f"buffer_load_dwordx4 {vr(SK,4)}, v{V_LANE16}, {ws}, s{S_T1} offen")
    A.e(f"s_add_u32 s{S_T1}, s{S_T0}, {WS_V}")
    A.e("s_mov_b32 exec_lo, 0x0000ffff")
    A.e("s_mov_b32 exec_hi, 0x0000ffff")
    A.e(f"buffer_load_dwordx4 {vr(VR,4)}, v{V_VOFF}, {ws}, s{S_T1} offen")
    A.e(f"buffer_load_dwordx4 {vr(VR+4,4)}, v{V_VOFF}, {ws}, s{S_T1} offen offset:512")
    A.e("s_mov_b64 exec, -1")
    A.e("s_waitcnt vmcnt(0)")
    A.e(mfma(SS, SK, SQ, SC))
    A.e("s_nop 15")
    for i in range(16):
        A.e(f"v_exp_f32 v{SS+i}, v{SS+i}")
    A.e("s_nop 0")
    for j in range(8):
        A.e(f"v_cvt_pk_bf16_f32 v{44+j}, v{SS+2*j}, v{SS+2*j+1}")
    A.e("s_nop 1")
    A.e(mfma(SO, VR, 44, SO))
    A.e(mfma(SO, VR + 4, 48, SO))
    A.e("s_nop 15")
    A.e(f"s_add_u32 s{S_T0}, s{S_T0}, 1024")
    A.e(f"s_cmp_lt_u32 s{S_T0}, 65536")
    A.e(f"s_cbranch_scc1 {l2}")
    for r in range(9):
        A.e(f"v_mov_b32 v{r}, v{SO+r}")
    A.e(f"s_branch {done1}")


def gen_k2(name="k2_kernel"):
    A = Asm()
    kernel_begin(A, name)
    S_WS, S_W, S_RT, S_HG = 28, 32, 33, 34
    A.e("s_cmp_ge_u32 s2, 256")
    A.e(f"s_cbranch_scc1 {name}_end")
    stamp(A, 0)
    A.e("s_load_dwordx2 s[12:13], s[0:1], 88")
    A.e("v_lshrrev_b32 v2, 6, v0")
    A.e("s_and_b32 s35, s2, 7")
    A.e(f"v_readfirstlane_b32 s{S_W}, v2")
    A.e("s_lshr_b32 s36, s2, 3")
    A.e(f"s_lshr_b32 s{S_HG}, s36, 3")
    A.e("s_and_b32 s36, s36, 7")
    A.e(f"s_lshl_b32 s{S_RT}, s35, 3")
    A.e(f"s_add_u32 s{S_RT}, s{S_RT}, s36")
    A.e("s_waitcnt lgkmcnt(0)")
    srd(A, S_WS, 12, WS_SIZE)
    gen_attention_body(A, name, S_WS, S_W, S_RT, S_HG, 4)
    A.label(f"{name}_end")
    A.e("s_endpgm")
    return A.text(), kernel_desc(name, 256), f"; @launch kernel={name} grid=(256,1,1) block=(256,1,1) lds={K2_ACC_SZ}"
```

```python
from asmlib import *
from layout import *
from ffn import tr_addr_perm

K3_O = 0
K3_W = 65536
K3_LDS = 131072

def gen_k3(name="k3_kernel"):
    A = Asm()
    kernel_begin(A, name)
    S_X, S_WO, S_OUT, S_WS = 16, 20, 24, 28
    S_W, S_RB, S_CB, S_T0, S_T1, S_OOFF, S_WOFF, S_RT, S_CT = range(32, 41)
    ws = f"s[{S_WS}:{S_WS+3}]"
    A.e("s_cmp_ge_u32 s2, 256")
    A.e(f"s_cbranch_scc1 {name}_end")
    stamp(A, 0)
    A.e("s_load_dwordx2 s[4:5], s[0:1], 0")
    A.e("s_load_dwordx2 s[6:7], s[0:1], 32")
    A.e("s_load_dwordx2 s[8:9], s[0:1], 72")
    A.e("s_load_dwordx2 s[12:13], s[0:1], 88")
    A.e("v_lshrrev_b32 v2, 6, v0")
    A.e("v_and_b32 v1, 63, v0")
    A.e(f"v_readfirstlane_b32 s{S_W}, v2")
    A.e(f"s_and_b32 s{S_T0}, s2, 7")
    A.e(f"s_lshr_b32 s{S_T1}, s2, 3")
    A.e(f"s_lshr_b32 s{S_CB}, s{S_T1}, 2")
    A.e(f"s_and_b32 s{S_T1}, s{S_T1}, 3")
    A.e(f"s_lshl_b32 s{S_RB}, s{S_T0}, 2")
    A.e(f"s_add_u32 s{S_RB}, s{S_RB}, s{S_T1}")
    A.e("v_lshlrev_b32 v3, 4, v1")
    A.e("v_lshrrev_b32 v5, 3, v1")
    A.e("v_and_b32 v6, 7, v1")
    A.e("v_bfe_u32 v7, v1, 4, 1")
    A.e("v_lshlrev_b32 v7, 2, v7")
    A.e("v_xor_b32 v6, v6, v7")
    A.e("v_lshlrev_b32 v4, 10, v5")
    A.e("v_lshl_add_u32 v4, v6, 4, v4")
    A.e(f"s_and_b32 s{S_T0}, s{S_W}, 1")
    A.e(f"s_lshl_b32 s{S_RT}, s{S_RB}, 1")
    A.e(f"s_add_u32 s{S_RT}, s{S_RT}, s{S_T0}")
    A.e(f"s_lshr_b32 s{S_T0}, s{S_W}, 1")
    A.e(f"s_lshl_b32 s{S_CT}, s{S_CB}, 1")
    A.e(f"s_add_u32 s{S_CT}, s{S_CT}, s{S_T0}")
    A.e(f"s_lshl_b32 s{S_OOFF}, s{S_RT}, 15")
    A.e(f"s_lshl_b32 s{S_T0}, s{S_T0}, 12")
    A.e(f"s_add_u32 s{S_OOFF}, s{S_OOFF}, s{S_T0}")
    A.e(f"s_add_u32 s{S_OOFF}, s{S_OOFF}, {WS_O}")
    A.e(f"s_and_b32 s41, s{S_W}, 1")
    A.e(f"s_lshl_b32 s41, s41, 15")
    A.e(f"s_add_u32 s41, s41, s{S_T0}")
    A.e(f"s_lshl_b32 s{S_WOFF}, s{S_W}, 15")
    A.e(f"s_lshl_b32 s{S_T0}, s{S_CB}, 7")
    A.e(f"s_add_u32 s{S_WOFF}, s{S_WOFF}, s{S_T0}")
    A.e(f"s_lshl_b32 s42, s{S_W}, 12")
    A.e(f"s_add_u32 s42, s42, {K3_W}")
    A.e("s_waitcnt lgkmcnt(0)")
    srd(A, S_WS, 12, WS_SIZE)
    srd(A, S_WO, 6, 512 * 1024)
    for c in range(4):
        A.e(f"s_add_u32 m0, s41, {K3_O + c*8192}")
        A.e(f"s_add_u32 s{S_T0}, s{S_OOFF}, {c*8192}")
        for i in range(4):
            A.vmem(f"buffer_load_dwordx4 v3, {ws}, s{S_T0} offen offset:{i*1024} lds", f"c{c}")
        for i in range(4):
            A.e(f"s_add_u32 m0, s42, {c*16384 + i*1024}")
            A.e(f"s_add_u32 s{S_T0}, s{S_WOFF}, {c*131072 + i*8192}")
            A.vmem(f"buffer_load_dwordx4 v4, s[{S_WO}:{S_WO+3}], s{S_T0} offen lds", f"c{c}")
    srd(A, S_X, 4, 2048 * 1024)
    srd(A, S_OUT, 8, 2048 * 1024)
    GR, XR = 64, 72
    A.e(f"s_lshl_b32 s{S_T0}, s{S_RT}, 4")
    A.e(f"s_add_u32 s{S_T0}, s{S_T0}, s{S_CT}")
    A.e(f"s_lshl_b32 s{S_T0}, s{S_T0}, 11")
    A.e(f"s_add_u32 s{S_T0}, s{S_T0}, {WS_G}")
    A.vmem(f"buffer_load_dwordx4 {vr(GR,4)}, v3, {ws}, s{S_T0} offen", "g")
    A.vmem(f"buffer_load_dwordx4 {vr(GR+4,4)}, v3, {ws}, s{S_T0} offen offset:1024", "g")
    A.e("v_and_b32 v8, 31, v1")
    A.e("v_lshlrev_b32 v8, 10, v8")
    A.e("v_lshrrev_b32 v9, 5, v1")
    A.e("v_lshl_add_u32 v8, v9, 5, v8")
    A.e(f"s_lshl_b32 s43, s{S_RT}, 15")
    A.e(f"s_lshl_b32 s{S_T0}, s{S_CT}, 6")
    A.e(f"s_add_u32 s43, s43, s{S_T0}")
    A.vmem(f"buffer_load_dwordx4 {vr(XR,4)}, v8, s[{S_X}:{S_X+3}], s43 offen", "g")
    A.vmem(f"buffer_load_dwordx4 {vr(XR+4,4)}, v8, s[{S_X}:{S_X+3}], s43 offen offset:16", "g")
    tr_addr_perm(A, 10, 1, 11, 12, 128)
    A.e("v_bfe_u32 v11, v1, 3, 1")
    A.e(f"s_lshr_b32 s{S_T0}, s{S_W}, 1")
    A.e(f"v_xor_b32 v11, s{S_T0}, v11")
    A.e("v_lshl_add_u32 v10, v11, 6, v10")
    A.e(f"v_add_u32 v10, {K3_W}, v10")
    A.e(f"s_and_b32 s{S_T0}, s{S_W}, 1")
    A.e(f"s_lshl_b32 s{S_T0}, s{S_T0}, 15")
    A.e(f"v_add_u32 v11, s{S_T0}, v3")
    ACC, BF, AF = 16, 32, 48
    for c in range(4):
        if c == 0: stamp(A, 1)
        A.wait_vm(f"c{c}")
        A.e("s_barrier")
        if c == 0: stamp(A, 2)
        if c == 3: stamp(A, 3)
        for half in range(2):
            for k in range(4):
                ks = 8 * c + 4 * half + k
                A.e(f"ds_read_b128 {vr(BF+4*k,4)}, v11 offset:{K3_O + ks*1024}")
                A.e(f"ds_read_b64_tr_b16 {vr(AF+4*k,2)}, v10 offset:{ks*2048}")
                A.e(f"ds_read_b64_tr_b16 {vr(AF+4*k+2,2)}, v10 offset:{ks*2048 + 1024}")
            for k in range(4):
                A.e(f"s_waitcnt lgkmcnt({9-3*k})")
                A.e(mfma(ACC, AF + 4*k, BF + 4*k, None if (c == 0 and half == 0 and k == 0) else ACC))
    A.wait_vm("g")
    GF, XF = 80, 96
    for i in range(8):
        A.e(f"v_lshlrev_b32 v{GF+2*i}, 16, v{GR+i}")
        A.e(f"v_and_b32 v{GF+2*i+1}, 0xffff0000, v{GR+i}")
        A.e(f"v_lshlrev_b32 v{XF+2*i}, 16, v{XR+i}")
        A.e(f"v_and_b32 v{XF+2*i+1}, 0xffff0000, v{XR+i}")
    for i in range(8):
        A.e(f"v_pk_fma_f32 {vr(XF+2*i,2)}, {vr(ACC+2*i,2)}, {vr(GF+2*i,2)}, {vr(XF+2*i,2)}")
    for i in range(8):
        A.e(f"v_cvt_pk_bf16_f32 v{GR+i}, v{XF+2*i}, v{XF+2*i+1}")
    A.e(f"buffer_store_dwordx4 {vr(GR,4)}, v8, s[{S_OUT}:{S_OUT+3}], s43 offen")
    A.e(f"buffer_store_dwordx4 {vr(GR+4,4)}, v8, s[{S_OUT}:{S_OUT+3}], s43 offen offset:16")
    stamp(A, 4)
    stamp_flush(A, 3, S_WS, S_W, 5)
    A.label(f"{name}_end")
    A.e("s_endpgm")
    return A.text(), kernel_desc(name, 112), f"; @launch kernel={name} grid=(256,1,1) block=(256,1,1) lds={K3_LDS}"
```

```python
from build import *
from asmlib import *
def gen_empty(name="nop_kernel", grid=1, block=64):
    A = Asm(); kernel_begin(A, name); A.e("s_endpgm")
    return A.text(), kernel_desc(name, 8, 16), f"; @launch kernel={name} grid=({grid},1,1) block=({block},1,1) lds=0"
k2 = gen_k2(); k2 = (k2[0], k2[1], k2[2].rsplit("lds=", 1)[0] + "lds=98304")
base = [gen_k1(), gen_kgu(), k2, gen_kd(), gen_k3()]
build(base, "vA.s")
build(base + [gen_empty()] * 4, "vB.s")
build(base + [base[4]], "vC.s")
build(base[:3] + [k2] + base[3:], "vD.s")
build([base[0]] + base, "vE.s")
build([gen_empty(grid=256, block=256)] * 4 + base, "vF.s")
```

```python
class Asm:
    def __init__(self):
        self.lines = []
        self.vm = []
        self._lab = 0

    def e(self, s):
        for ln in s.split("\n"):
            ln = ln.strip()
            if ln:
                self.lines.append("    " + ln if not ln.endswith(":") else ln)

    def c(self, s):
        self.lines.append("    ; " + s)

    def label(self, name):
        self.lines.append(name + ":")

    def newlabel(self, base):
        self._lab += 1
        return f"{base}_{self._lab}"

    def vmem(self, s, tag):
        self.e(s)
        self.vm.append(tag)

    def vm_count_after(self, tag):
        idx = max(i for i, t in enumerate(self.vm) if t == tag)
        return len(self.vm) - 1 - idx

    def wait_vm(self, tag, extra=""):
        n = self.vm_count_after(tag)
        assert n <= 63, n
        self.e(f"s_waitcnt vmcnt({n}){extra}")
        idx = len(self.vm) - n
        self.vm = self.vm[idx:]

    def text(self):
        return "\n".join(self.lines) + "\n"


def vr(a, n=1):
    return f"v{a}" if n == 1 else f"v[{a}:{a+n-1}]"

def sr(a, n=1):
    return f"s{a}" if n == 1 else f"s[{a}:{a+n-1}]"

def mfma(d, a, b, c=None):
    cs = "0" if c is None else vr(c, 16)
    return f"v_mfma_f32_32x32x16_bf16 {vr(d,16)}, {vr(a,4)}, {vr(b,4)}, {cs}"

def srd(A, dst, base, size):
    A.e(f"s_mov_b32 s{dst}, s{base}")
    A.e(f"s_mov_b32 s{dst+1}, s{base+1}")
    A.e(f"s_mov_b32 s{dst+2}, {hex(size)}")
    A.e(f"s_mov_b32 s{dst+3}, 0x00020000")

def kernel_begin(A, name):
    A.lines.append(".text")
    A.lines.append(f".globl {name}")
    A.lines.append(".p2align 8")
    A.lines.append(f".type {name},@function")
    A.lines.append(f"{name}:")

def kernel_desc(name, vgpr, sgpr=96):
    acc = (vgpr + 3) // 4 * 4
    return f""".section .rodata,"a"
.p2align 6
.amdhsa_kernel {name}
  .amdhsa_next_free_vgpr {vgpr}
  .amdhsa_next_free_sgpr {sgpr}
  .amdhsa_accum_offset {acc}
  .amdhsa_group_segment_fixed_size 0
  .amdhsa_kernarg_size 96
  .amdhsa_user_sgpr_count 2
  .amdhsa_user_sgpr_kernarg_segment_ptr 1
  .amdhsa_system_sgpr_workgroup_id_x 1
.end_amdhsa_kernel
"""

import struct
def f32hex(x):
    return "0x%08x" % struct.unpack("<I", struct.pack("<f", x))[0]


import os
STAMPS = os.environ.get("STAMPS", "0") == "1"
SPAN = os.environ.get("STAMPS", "0") == "2"
LAUNCH_IDX = {}
WS_STAMP = 0xF00000
def stamp(A, idx):
    if SPAN and idx == 0:
        A.e("s_memrealtime s[80:81]")
        A.e("s_load_dwordx2 s[86:87], s[0:1], 80")
    if not STAMPS: return
    A.e(f"s_memtime s[{64+2*idx}:{65+2*idx}]")
    if idx == 0:
        A.e("s_memrealtime s[80:81]")

def stamp_flush(A, kidx, S_WS, S_W, n, vt=2):
    if SPAN:
        li = LAUNCH_IDX[kidx]
        A.e("s_memrealtime s[82:83]")
        A.e("s_waitcnt lgkmcnt(0)")
        A.e(f"s_sub_u32 s88, s86, {512*li}")
        A.e("s_subb_u32 s89, s87, 0")
        A.e("s_mov_b32 s90, 256")
        A.e("s_mov_b32 s91, 0x00020000")
        A.e("s_not_b32 s80, s80")
        A.e("s_mov_b64 exec, 1")
        A.e(f"v_mov_b32 v{vt}, 0")
        A.e(f"v_mov_b32 v{vt+1}, s80")
        A.e(f"buffer_atomic_umax v{vt+1}, v{vt}, s[88:91], 0 offen offset:{8*li}")
        A.e("s_nop 1")
        A.e(f"v_mov_b32 v{vt+1}, s82")
        A.e(f"buffer_atomic_umax v{vt+1}, v{vt}, s[88:91], 0 offen offset:{8*li+4}")
        return
    if not STAMPS: return
    A.e("s_memrealtime s[82:83]")
    A.e("s_waitcnt lgkmcnt(0)")
    A.e("s_lshl_b32 s84, s2, 4")
    A.e(f"s_add_u32 s84, s84, s{S_W}")
    A.e("s_lshl_b32 s84, s84, 6")
    A.e(f"s_add_u32 s84, s84, {WS_STAMP + kidx*0x40000}")
    A.e("s_mov_b64 exec, 1")
    A.e(f"v_mov_b32 v{vt}, 0")
    srcs = [64 + 2 * i for i in range(n)] + [None] * (8 - n) + [80, 82]
    for i, sreg in enumerate(srcs):
        if sreg is None: continue
        A.e(f"v_mov_b32 v{vt+1}, s{sreg}")
        A.e(f"buffer_store_dword v{vt+1}, v{vt}, s[{S_WS}:{S_WS+3}], s84 offen offset:{4*i}")
        A.e("s_nop 1")
```

```python
class Asm:
    def __init__(self):
        self.lines = []
        self.vm = []
        self._lab = 0

    def e(self, s):
        for ln in s.split("\n"):
            ln = ln.strip()
            if ln:
                self.lines.append("    " + ln if not ln.endswith(":") else ln)

    def c(self, s):
        self.lines.append("    ; " + s)

    def label(self, name):
        self.lines.append(name + ":")

    def newlabel(self, base):
        self._lab += 1
        return f"{base}_{self._lab}"

    def vmem(self, s, tag):
        self.e(s)
        self.vm.append(tag)

    def vm_count_after(self, tag):
        idx = max(i for i, t in enumerate(self.vm) if t == tag)
        return len(self.vm) - 1 - idx

    def wait_vm(self, tag, extra=""):
        n = self.vm_count_after(tag)
        assert n <= 63, n
        self.e(f"s_waitcnt vmcnt({n}){extra}")
        idx = len(self.vm) - n
        self.vm = self.vm[idx:]

    def text(self):
        return "\n".join(self.lines) + "\n"


def vr(a, n=1):
    return f"v{a}" if n == 1 else f"v[{a}:{a+n-1}]"

def sr(a, n=1):
    return f"s{a}" if n == 1 else f"s[{a}:{a+n-1}]"

def mfma(d, a, b, c=None):
    cs = "0" if c is None else vr(c, 16)
    return f"v_mfma_f32_32x32x16_bf16 {vr(d,16)}, {vr(a,4)}, {vr(b,4)}, {cs}"

def srd(A, dst, base, size):
    A.e(f"s_mov_b32 s{dst}, s{base}")
    A.e(f"s_mov_b32 s{dst+1}, s{base+1}")
    A.e(f"s_mov_b32 s{dst+2}, {hex(size)}")
    A.e(f"s_mov_b32 s{dst+3}, 0x00020000")

def kernel_begin(A, name):
    A.lines.append(".text")
    A.lines.append(f".globl {name}")
    A.lines.append(".p2align 8")
    A.lines.append(f".type {name},@function")
    A.lines.append(f"{name}:")

def kernel_desc(name, vgpr, sgpr=96):
    acc = (vgpr + 3) // 4 * 4
    return f""".section .rodata,"a"
.p2align 6
.amdhsa_kernel {name}
  .amdhsa_next_free_vgpr {vgpr}
  .amdhsa_next_free_sgpr {sgpr}
  .amdhsa_accum_offset {acc}
  .amdhsa_group_segment_fixed_size 0
  .amdhsa_kernarg_size 96
  .amdhsa_user_sgpr_count 2
  .amdhsa_user_sgpr_kernarg_segment_ptr 1
  .amdhsa_system_sgpr_workgroup_id_x 1
.end_amdhsa_kernel
"""

import struct
def f32hex(x):
    return "0x%08x" % struct.unpack("<I", struct.pack("<f", x))[0]


import os
STAMPS = os.environ.get("STAMPS", "0") == "1"
SPAN = os.environ.get("STAMPS", "0") == "2"
LAUNCH_IDX = {}
WS_STAMP = 0xF00000
def stamp(A, idx):
    if SPAN and idx == 0:
        A.e("s_memrealtime s[80:81]")
        A.e("s_load_dwordx2 s[86:87], s[0:1], 80")
    if not STAMPS: return
    A.e(f"s_memtime s[{64+2*idx}:{65+2*idx}]")
    if idx == 0:
        A.e("s_memrealtime s[80:81]")

def stamp_flush(A, kidx, S_WS, S_W, n, vt=2):
    if SPAN:
        li = LAUNCH_IDX[kidx]
        A.e("s_memrealtime s[82:83]")
        A.e("s_waitcnt lgkmcnt(0)")
        lab = A.newlabel(f"span_skip_k{kidx}")
        A.e("s_and_b32 s84, s2, 0x38")
        A.e(f"s_or_b32 s84, s84, s{S_W}")
        A.e("s_cmp_lg_u32 s84, 0")
        A.e(f"s_cbranch_scc1 {lab}")
        A.e(f"s_add_u32 s88, s86, {512*(max(LAUNCH_IDX.values()) - li)}")
        A.e("s_addc_u32 s89, s87, 0")
        A.e("s_mov_b32 s90, 256")
        A.e("s_mov_b32 s91, 0x00020000")
        A.e("s_not_b32 s80, s80")
        A.e("s_mov_b64 exec, 1")
        A.e(f"v_mov_b32 v{vt}, 0")
        A.e(f"v_mov_b32 v{vt+1}, s80")
        A.e(f"buffer_atomic_umax v{vt+1}, v{vt}, s[88:91], 0 offen offset:{8*li}")
        A.e("s_nop 1")
        A.e(f"v_mov_b32 v{vt+1}, s82")
        A.e(f"buffer_atomic_umax v{vt+1}, v{vt}, s[88:91], 0 offen offset:{8*li+4}")
        A.label(lab)
        return
    if not STAMPS: return
    A.e("s_memrealtime s[82:83]")
    A.e("s_waitcnt lgkmcnt(0)")
    A.e("s_lshl_b32 s84, s2, 4")
    A.e(f"s_add_u32 s84, s84, s{S_W}")
    A.e("s_lshl_b32 s84, s84, 6")
    A.e(f"s_add_u32 s84, s84, {WS_STAMP + kidx*0x40000}")
    A.e("s_mov_b64 exec, 1")
    A.e(f"v_mov_b32 v{vt}, 0")
    srcs = [64 + 2 * i for i in range(n)] + [None] * (8 - n) + [80, 82]
    for i, sreg in enumerate(srcs):
        if sreg is None: continue
        A.e(f"v_mov_b32 v{vt+1}, s{sreg}")
        A.e(f"buffer_store_dword v{vt+1}, v{vt}, s[{S_WS}:{S_WS+3}], s84 offen offset:{4*i}")
        A.e("s_nop 1")
```

```python
import os, sys
os.environ["STAMPS"] = "2"
from build import *
import asmlib
from asmlib import *
def gen_pad(mode, name="pad_kernel"):
    A = Asm(); kernel_begin(A, name)
    A.e("s_cmp_ge_u32 s2, 1")
    A.e(f"s_cbranch_scc1 {name}_end")
    A.e("s_load_dwordx2 s[4:5], s[0:1], 80")
    A.e("s_waitcnt lgkmcnt(0)")
    srd(A, 8, 4, 256)
    A.e("v_lshlrev_b32 v1, 2, v0")
    A.e("buffer_load_dword v2, v1, s[8:11], 0 offen sc1")
    A.e("s_waitcnt vmcnt(0)")
    A.e("v_readlane_b32 s20, v2, 0")
    A.e("s_not_b32 s20, s20")
    A.e("s_mov_b32 s21, 10000")
    if mode != "abs":
        i = mode[1]
        A.e(f"v_readlane_b32 s22, v2, {2*i}")
        A.e(f"v_readlane_b32 s23, v2, {2*i+1}")
        A.e("s_not_b32 s22, s22")
        if mode[0] == "dur": A.e("s_sub_u32 s22, s23, s22")
        else: A.e("s_sub_u32 s22, s22, s20")
        A.e("s_min_u32 s22, s22, 20000")
        A.e("s_mul_i32 s22, s22, 10")
        A.e("s_add_u32 s21, s21, s22")
    A.e("s_mov_b32 s26, 0")
    A.label(f"{name}_spin")
    A.e("s_memrealtime s[24:25]")
    A.e("s_waitcnt lgkmcnt(0)")
    A.e("s_sub_u32 s24, s24, s20")
    A.e("s_add_u32 s26, s26, 1")
    A.e("s_cmp_gt_u32 s26, 400000")
    A.e(f"s_cbranch_scc1 {name}_end")
    A.e("s_cmp_lt_u32 s24, s21")
    A.e(f"s_cbranch_scc1 {name}_spin")
    A.label(f"{name}_end")
    A.e("s_endpgm")
    return A.text(), kernel_desc(name, 8, 32), f"; @launch kernel={name} grid=(1,1,1) block=(64,1,1) lds=0"
asmlib.LAUNCH_IDX.update({0: 0, 1: 1, 2: 2, 4: 3, 3: 4, 9: 5})
k2 = gen_k2(); k2 = (k2[0], k2[1], k2[2].rsplit("lds=", 1)[0] + "lds=98304")
base = [gen_k1(), gen_kgu(), k2, gen_kd(), gen_k3()]
build(base + [gen_pad("abs")], "pA.s")
for i in range(5):
    build(base + [gen_pad(("dur", i))], f"pD{i}.s")
    build(base + [gen_pad(("at", i))], f"pT{i}.s")
```
